```python
import torch

def _softmax(x, axis=-1):
    return torch.softmax(x, dim=axis)
def _gelu(x):
    return torch.nn.functional.gelu(x, approximate="tanh")
def _silu(x):
    return torch.nn.functional.silu(x)
def _sigmoid(x):
    return torch.sigmoid(x)
def _layernorm(x, axis=-1, eps=1e-5):
    m = x.mean(dim=axis, keepdim=True)
    v = x.var(dim=axis, keepdim=True, unbiased=False)
    return (x - m) / torch.sqrt(v + eps)
def _scatter_add(tgt, idx, src, axis=0):
    return tgt.clone().index_add_(axis, idx, src)
def _segment_sum(src, seg, n):
    out = torch.zeros((n,) + src.shape[1:], dtype=src.dtype)
    return out.index_add_(0, seg, src)
def _pad(x, pw):
    flat = tuple(v for pair in reversed(pw) for v in pair)
    return torch.nn.functional.pad(x, flat)

kernel_name = 'gated_mix__ssm_conv_s4__glu_gated_bilinear__prompt'

def setup_inputs():

    _w = (lambda a: (lambda t: t.to(torch.bfloat16) if t.is_floating_point() else t)(torch.as_tensor(a)))
    def _A_setup():
        B, L, D, N = 1, 2048, 448, 256
        A_re = -(lambda _x: torch.exp(torch.as_tensor(_x)))((lambda *s: torch.randn(*s, dtype=torch.bfloat16) * 3.2)(D, N))
        A_im = torch.pi * (lambda *s: torch.randn(*s, dtype=torch.bfloat16) * 0.05)(D, N)
        B_re = (lambda *s: torch.randn(*s, dtype=torch.bfloat16) * 0.05)(D, N)
        B_im = (lambda *s: torch.randn(*s, dtype=torch.bfloat16) * 0.05)(D, N)
        C_re = (lambda *s: torch.randn(*s, dtype=torch.bfloat16) * 0.05)(D, N)
        C_im = (lambda *s: torch.randn(*s, dtype=torch.bfloat16) * 0.1)(D, N)
        log_dt = (lambda *s: torch.randn(*s, dtype=torch.bfloat16) * 0.05)(D) * 0.5 - 4.0
        Dskip = (lambda *s: torch.randn(*s, dtype=torch.bfloat16) * 0.05)(D)
        return {
            "u": _w((lambda *s: torch.randn(*s, dtype=torch.bfloat16) * 0.05)(B, L, D)),
            "A_re": _w(A_re),
            "A_im": _w(A_im),
            "B_re": _w(B_re),
            "B_im": _w(B_im),
            "C_re": _w(C_re),
            "C_im": _w(C_im),
            "log_dt": _w(log_dt),
            "Dskip": _w(Dskip),
        }
    _A_in = _A_setup()

    def _B_setup():
        B, S, D, F = 1, 2048, 448, 1792
        return {
            "x": _w((lambda *s: torch.randn(*s, dtype=torch.bfloat16) * 0.05)(B, S, D)),
            "w_gate": _w((lambda *s: torch.randn(*s, dtype=torch.bfloat16) * 0.8)(D, F) * (D ** -0.5)),
            "w_up": _w((lambda *s: torch.randn(*s, dtype=torch.bfloat16) * 0.8)(D, F) * (D ** -0.5)),
            "w_down": _w((lambda *s: torch.randn(*s, dtype=torch.bfloat16) * 0.8)(F, D) * (F ** -0.5)),
        }
    _B_in = _B_setup()

    return {
        "A_u": _A_in["u"],
        "A_A_re": _A_in["A_re"],
        "A_A_im": _A_in["A_im"],
        "A_B_re": _A_in["B_re"],
        "A_B_im": _A_in["B_im"],
        "A_C_re": _A_in["C_re"],
        "A_C_im": _A_in["C_im"],
        "A_log_dt": _A_in["log_dt"],
        "A_Dskip": _A_in["Dskip"],
        "B_x": _B_in["x"],
        "B_w_gate": _B_in["w_gate"],
        "B_w_up": _B_in["w_up"],
        "B_w_down": _B_in["w_down"],
        "gate_w": _w((lambda *s: torch.randn(*s, dtype=torch.bfloat16) * 0.05)(448) * 16.0),
    }

def reference(A_u, A_A_re, A_A_im, A_B_re, A_B_im, A_C_re, A_C_im, A_log_dt, A_Dskip, B_x, B_w_gate, B_w_up, B_w_down, gate_w):
    def _A_ref(u, A_re, A_im, B_re, B_im, C_re, C_im, log_dt, Dskip):
        Bsz, L, D = u.shape
        dt = torch.exp(log_dt)[:, None]
        A = A_re + 1j * A_im
        Bc = B_re + 1j * B_im
        Cc = C_re + 1j * C_im
        logdA = dt * A
        dB = dt * Bc
        l = (lambda x, dt: x.to(dt))(torch.arange(L), A_re.dtype)
        P = torch.exp(logdA[:, :, None] * l[None, None, :])
        K = torch.einsum("dn,dnl,dn->dl", Cc, P, dB).real
        L2 = 2 * L
        Kp = _pad(K, ((0, 0), (0, L)))
        up = (lambda x, *d: x.permute(*d))(u, 0, 2, 1)
        up = _pad(up, ((0, 0), (0, 0), (0, L)))
        Kf = (lambda x, axes=(-2,-1): torch.fft.rfft2(x.float(), dim=axes))(Kp[:, None, :], axes=(-2, -1))
        Uf = (lambda x, axes=(-2,-1): torch.fft.rfft2(x.float(), dim=axes))(up[:, :, None, :], axes=(-2, -1))
        Yf = Uf * Kf[None, :, :, :]
        y = (lambda x, s, axes=(-2,-1): torch.fft.irfft2(x, s=s, dim=axes).to(torch.bfloat16))(Yf, (1, L2), axes=(-2, -1))[:, :, 0, :L]
        y = (lambda x, *d: x.permute(*d))(y, 0, 2, 1) + u * Dskip[None, None, :]
        return y

    def _B_ref(x, w_gate, w_up, w_down):
        g = torch.einsum("bsd,df->bsf", x, w_gate)
        u = torch.einsum("bsd,df->bsf", x, w_up)
        h = g * u
        return torch.einsum("bsf,fd->bsd", h, w_down)

    x = A_u
    g = _sigmoid((x * gate_w).sum(-1, keepdims=True))
    a = _A_ref(x, A_A_re, A_A_im, A_B_re, A_B_im, A_C_re, A_C_im, A_log_dt, A_Dskip)
    b = _B_ref(x, B_w_gate, B_w_up, B_w_down)
    return g * a + (1 - g) * b
```

```python
import re

def _regs(tok):
    tok = tok.strip()
    tok = tok.lstrip('-')
    if tok.startswith('abs(') or tok.startswith('|'):
        tok = tok.strip('|').replace('abs(', '').rstrip(')')
    m = re.fullmatch(r'([vsa])\[(\d+):(\d+)\]', tok)
    if m:
        return {(m.group(1), i) for i in range(int(m.group(2)), int(m.group(3)) + 1)}
    m = re.fullmatch(r'([vsa])(\d+)', tok)
    if m:
        return {(m.group(1), int(m.group(2)))}
    if tok == 'vcc': return {('s', 'vcc')}
    if tok in ('vcc_lo', 'vcc_hi'): return {('s', 'vcc')}
    if tok == 'exec' or tok in ('exec_lo', 'exec_hi'): return {('s', 'exec')}
    if tok == 'm0': return {('s', 'm0')}
    return set()

TRANS = ('v_exp_f32', 'v_log_f32', 'v_rcp_f32', 'v_rsq_f32', 'v_sqrt_f32', 'v_sin_f32', 'v_cos_f32', 'v_rcp_iflag_f32')

class Ins:
    def __init__(self, text):
        self.text = text
        t = text.split(';')[0].strip()
        self.is_label = t.endswith(':')
        self.is_dir = t.startswith('.')
        self.op = ''
        self.w = set(); self.r = set()
        self.kind = 'other'
        if self.is_label or self.is_dir or not t:
            self.kind = 'none'
            return
        parts = t.split(None, 1)
        op = parts[0]; self.op = op
        rest = parts[1] if len(parts) > 1 else ''
        ops = []
        depth = 0; cur = ''
        for ch in rest:
            if ch == '[': depth += 1
            if ch == ']': depth -= 1
            if ch == ',' and depth == 0:
                ops.append(cur.strip()); cur = ''
            else: cur += ch
        if cur.strip(): ops.append(cur.strip())
        mods = ''
        if ops:
            last = ops[-1].split(None, 1)
            ops[-1] = last[0]
            mods = last[1] if len(last) > 1 else ''
        self.ops = ops; self.mods = mods
        R = [_regs(o) for o in ops]
        allr = set().union(*R) if R else set()
        base = op.replace('_e32', '').replace('_e64', '').replace('_dpp', '').replace('_sdwa', '')
        self.base = base
        self.dpp = ('quad_perm' in t or 'row_sh' in t or 'row_ror' in t or 'row_bcast' in t or 'wave_sh' in t or 'row_mirror' in t or 'row_half_mirror' in t or 'row_newbcast' in t)
        if op.startswith('v_mfma'):
            self.kind = 'mfma'
            self.w = R[0]; self.ra = R[1]; self.rb = R[2]; self.rc = R[3] if len(R) > 3 else set()
            self.r = self.ra | self.rb | self.rc
            self.passes = 8 if '32x32' in op else 4
        elif op.startswith('v_cmp'):
            self.kind = 'valu'
            self.w = R[0]; self.r = set().union(*R[1:])
            if op.startswith('v_cmpx'): self.w = self.w | {('s', 'exec')}
        elif base in ('v_readfirstlane_b32', 'v_readlane_b32'):
            self.kind = 'valu'; self.lane_read = True
            self.w = R[0]; self.r = set().union(*R[1:])
        elif op.startswith('v_'):
            self.kind = 'valu'
            self.w = R[0]; self.r = set().union(*R[1:]) if len(R) > 1 else set()
            if base in ('v_add_co_u32', 'v_addc_co_u32', 'v_sub_co_u32', 'v_subb_co_u32'):
                self.w = R[0] | R[1]; self.r = set().union(*R[2:])
            if base in ('v_fmac_f32', 'v_dot2c_f32_bf16', 'v_pk_fmac_f16', 'v_writelane_b32', 'v_mov_b32') and (base != 'v_mov_b32' or self.dpp):
                self.r |= R[0]
            if base == 'v_cndmask_b32' and len(ops) == 3: self.r |= {('s', 'vcc')}
            if base.startswith('v_permlane') : self.w = R[0] | R[1]; self.r = R[0] | R[1]
            if 'd16' in op: pass
        elif op.startswith('ds_'):
            self.kind = 'ds'
            if op.startswith('ds_read') or op.startswith('ds_bpermute') or op.startswith('ds_permute') or op.startswith('ds_swizzle'):
                self.w = R[0]; self.r = set().union(*R[1:]) if len(R) > 1 else set()
                if 'd16' in op: self.r |= R[0]
            elif '_rtn' in op:
                self.w = R[0]; self.r = set().union(*R[1:])
            else:
                self.r = allr
            if 'addtid' in op: self.r |= {('s', 'm0')}
        elif op.startswith('buffer_') or op.startswith('global_') or op.startswith('flat_'):
            self.kind = 'vmem'
            islds = re.search(r'\blds\b', t) is not None or 'load_lds' in op
            if 'load' in op and not islds:
                self.w = R[0]; self.r = set().union(*R[1:])
            elif 'atomic' in op and re.search(r'\bsc0\b', t):
                self.w = R[0]; self.r = set().union(*R[1:])
            else:
                self.r = allr
            if islds: self.r |= {('s', 'm0')}; self.ldsdma = True
            self.wide_store = ('store' in op) and (op.endswith('x4') or op.endswith('x3'))
            if self.wide_store:
                self.sdata = R[0] if op.startswith('buffer_') else R[1]
        elif op.startswith('s_'):
            self.kind = 'salu'
            if op.startswith('s_cbranch') or op == 's_branch':
                self.kind = 'branch'; self.target = ops[0]
                if 'vcc' in op: self.r = {('s', 'vcc')}
                if 'exec' in op: self.r = {('s', 'exec')}
            elif op in ('s_waitcnt', 's_barrier', 's_nop', 's_endpgm', 's_sleep', 's_setprio'):
                self.kind = 'sctl'
            elif op.startswith('s_cmp') or op.startswith('s_bitcmp'):
                self.r = allr
            elif op.startswith('s_load') or op.startswith('s_buffer_load') or op in ('s_memtime', 's_memrealtime'):
                self.kind = 'smem'
                self.w = R[0]; self.r = set().union(*R[1:]) if len(R) > 1 else set()
            else:
                self.w = R[0]; self.r = set().union(*R[1:]) if len(R) > 1 else set()
                if 'saveexec' in op: self.w = self.w | {('s', 'exec')}; self.r |= {('s', 'exec')}
    def states(self):
        if self.kind == 'none': return 0
        if self.op == 's_nop':
            return int(self.ops[0], 0) + 1
        return 1

def vonly(s): return {x for x in s if x[0] in ('v', 'a')}
def sonly(s): return {x for x in s if x[0] == 's'}

def need(p, c):
    n = 0
    if p.kind == 'valu':
        pv = vonly(p.w); ps = sonly(p.w)
        if c.kind == 'mfma' and pv & c.r: n = max(n, 2)
        if c.kind == 'mfma' and ('s', 'exec') in ps: n = max(n, 4)
        if c.kind == 'vmem' and ps & c.r: n = max(n, 5)
        if c.kind == 'valu' and (ps - {('s', 'exec')}) & c.r: n = max(n, 2)
        if c.kind == 'valu' and getattr(c, 'lane_read', False):
            if pv & c.r: n = max(n, 1)
            if ps & c.r: n = max(n, 4)
            if ('s', 'exec') in ps: n = max(n, 4)
        if c.kind == 'valu' and c.dpp:
            if pv & c.r: n = max(n, 2)
            if ('s', 'exec') in ps: n = max(n, 5)
        if c.kind == 'valu' and c.base.startswith('v_permlane') and pv & c.r: n = max(n, 2)
        if p.base in TRANS and c.kind in ('valu', 'mfma') and c.__dict__.get('base') not in TRANS and pv & c.r: n = max(n, 1)
        if p.base in TRANS and c.kind in ('ds', 'vmem') and pv & c.r: n = max(n, 1)
        if c.kind == 'branch' and (('s', 'vcc') in ps and ('s', 'vcc') in c.r or ('s', 'exec') in ps and ('s','exec') in c.r): n = max(n, 5)
        if c.kind in ('salu',) and ps & c.r: n = max(n, 4)
        if c.kind in ('ds',) and ('s', 'exec') in ps: n = max(n, 0)
    if p.kind == 'salu':
        if ('s', 'm0') in p.w and (getattr(c, 'ldsdma', False) or (c.kind == 'ds' and 'addtid' in c.op)): n = max(n, 1)
    if p.kind == 'mfma':
        big = p.passes == 8
        if c.kind == 'mfma':
            if p.w & (c.ra | c.rb): n = max(n, 12 if big else 8)
            if p.w & c.rc:
                if not (p.w == c.rc and p.passes == c.passes): n = max(n, 10 if big else 6)
            if p.w & c.w and not (p.w == c.w): n = max(n, 10 if big else 6)
        elif c.kind == 'valu':
            if p.w & (c.r | c.w): n = max(n, 12 if big else 8)
            if p.rc & c.w: n = max(n, 7 if big else 3)
        elif c.kind in ('vmem', 'ds'):
            if p.w & (c.r | c.w): n = max(n, 12 if big else 8)
            if p.rc & c.w: n = max(n, 7 if big else 3)
    if p.kind == 'vmem' and getattr(p, 'wide_store', False):
        if c.kind == 'valu' and p.sdata & c.w: n = max(n, 2)
        elif c.kind in ('ds', 'vmem') and p.sdata & c.w: n = max(n, 1)
    if p.kind == 'ds' and p.op in ('ds_write_b128', 'ds_write_b96'):
        pass
    return n

class Asm:
    def __init__(self):
        self.ins = []
    def e(self, text):
        for line in text.split('\n'):
            line = line.strip()
            if line: self.ins.append(Ins(line))
    def label(self, name): self.e(name + ':')
    def fix_hazards(self, window=24):
        out = []
        for c in self.ins:
            if c.kind == 'none':
                out.append(c); continue
            dist = 0; req = 0
            for p in reversed(out[-(window * 2):]):
                if p.kind == 'none': continue
                nn = need(p, c) - dist
                if nn > req: req = nn
                dist += p.states()
                if dist > 20: break
            while req > 0:
                k = min(req, 16)
                out.append(Ins(f's_nop {k-1}')); req -= k
            out.append(c)
        self.ins = out
        labels = {i.text.split(';')[0].strip()[:-1]: n for n, i in enumerate(self.ins) if i.is_label}
        problems = []
        for n, b in enumerate(self.ins):
            if b.kind != 'branch': continue
            t = labels.get(b.target)
            if t is None: continue
            pre = [i for i in self.ins[max(0, n - 40):n + 1] if i.kind != 'none']
            post = [i for i in self.ins[t:t + 40] if i.kind != 'none']
            d0 = 0
            for p in reversed(pre):
                d = d0
                for c in post:
                    if need(p, c) > d:
                        problems.append((b.text, p.text, c.text, need(p, c), d))
                    d += c.states()
                    if d > 20: break
                d0 += p.states()
                if d0 > 20: break
        return problems
    def text(self):
        return '\n'.join((i.text if (i.is_label or i.is_dir) else '    ' + i.text) for i in self.ins) + '\n'
```

```python
L, D, F, N = 2048, 448, 1792, 256
KA_U, KA_ARE, KA_AIM, KA_BRE, KA_BIM, KA_CRE, KA_CIM, KA_LOGDT, KA_DSKIP, KA_BX, KA_WG, KA_WU, KA_WD, KA_GW, KA_OUT, KA_DBG, KA_WS = [8*i for i in range(17)]
WS_H = 0x000000; WS_H_SIZE = 64*112*1024
WS_WD = 0x700000; WS_WD_SIZE = 14*112*1024
WS_UT = 0x900000
WS_AT = 0xB00000
WS_K2 = 0xD00000
WS_G = 0xE00000
G1_WB = 32768
KG_B = 32*272
KG_WAVE = 2*32*272
```

```python
from asmlib import Asm
from common import *

def gemm1(a, opt):
    e = a.e
    ROT = opt.get('rot1', 0)
    a.label('L_gemm1')
    e(f"""
    s_load_dwordx2 s[4:5], s[0:1], {KA_U}
    s_load_dwordx4 s[8:11], s[0:1], {KA_WG}
    s_load_dwordx2 s[16:17], s[0:1], {KA_WS}
    s_and_b32 s20, s2, 7
    s_lshr_b32 s21, s2, 3
    s_and_b32 s22, s20, 1
    s_lshr_b32 s23, s20, 1
    s_mul_i32 s23, s23, 28
    s_add_u32 s23, s23, s21
    s_lshr_b32 s24, s23, 3
    s_and_b32 s23, s23, 7
    s_lshl_b32 s22, s22, 3
    s_add_u32 s23, s23, s22
    v_lshrrev_b32 v1, 6, v0
    v_and_b32 v2, 63, v0
    v_readfirstlane_b32 s25, v1
    """)
    vW, vX0, vX1 = 'v3', 'v4', 'v5'
    vAc = ['v6', 'v7']; vA = ['v8', 'v9']; vB = ['v10', 'v11', 'v12', 'v13']
    e(f"""
    v_lshrrev_b32 v14, 4, v2          ; lane>>4
    v_bfe_u32 v15, v2, 2, 2           ; (lane>>2)&3
    v_and_b32 v16, 3, v2              ; lane&3
    v_xor_b32 v17, v15, v14
    v_lshlrev_b32 v17, 6, v17
    v_lshl_add_u32 v17, v16, 4, v17
    v_mul_u32_u24 v18, 3584, v14
    v_add_u32 {vW}, v17, v18
    v_lshrrev_b32 v17, 3, v2          ; lane>>3
    v_mul_u32_u24 v18, 896, v17
    v_and_b32 v19, 7, v2
    v_xor_b32 v20, v19, v14
    v_lshl_add_u32 {vX0}, v20, 4, v18
    v_or_b32 v20, 4, v14
    v_xor_b32 v20, v19, v20
    v_lshl_add_u32 {vX1}, v20, 4, v18
    """)
    e(f"""
    s_and_b32 s26, s25, 1             ; wf
    s_lshr_b32 s27, s25, 1            ; wt
    v_lshrrev_b32 v17, 5, v2          ; hh
    v_lshl_add_u32 v18, v17, 3, v15
    v_lshlrev_b32 v18, 8, v18
    v_and_b32 v19, 1, v14             ; cb
    v_lshl_add_u32 v18, v19, 5, v18
    v_lshl_add_u32 v18, v16, 3, v18
    s_lshl_b32 s28, s26, 1
    v_xor_b32 v19, s28, v15
    v_lshl_add_u32 {vAc[0]}, v19, 6, v18
    s_add_u32 s28, s28, 1
    v_xor_b32 v19, s28, v15
    v_lshl_add_u32 {vAc[1]}, v19, 6, v18
    v_and_b32 v18, 31, v2             ; l&31
    v_bfe_u32 v19, v18, 1, 3          ; swz
    s_lshl_b32 s28, s27, 6
    v_add_u32 v18, s28, v18
    v_lshlrev_b32 v18, 7, v18
    """)
    for sp in range(4):
        e(f"""
        v_add_u32 v20, {2*sp}, v17
        v_xor_b32 v20, v20, v19
        v_lshl_add_u32 {vB[sp]}, v20, 4, v18
        """)
    e(f"""
    s_mul_i32 s30, s25, {8*3584}
    s_lshl_b32 s28, s24, 8
    s_add_u32 s30, s30, s28
    s_lshl_b32 s31, s23, 7
    s_lshl_b32 s28, s25, 5
    s_add_u32 s31, s31, s28
    s_mul_i32 s31, s31, 896
    s_lshl_b32 s32, s25, 11
    s_add_u32 s32, s32, {G1_WB}
    s_lshl_b32 s33, s25, 12
    """)
    if ROT:
        e(f"""
        s_mul_i32 s34, s21, {ROT}
        s_mul_i32 s28, s34, 9363
        s_lshr_b32 s28, s28, 16
        s_mul_i32 s28, s28, 7
        s_sub_u32 s34, s34, s28
        """)
    else:
        e("s_mov_b32 s34, 0")
    e(f"""
    s_waitcnt lgkmcnt(0)
    s_mov_b32 s12, s10
    s_mov_b32 s13, s11
    s_mov_b32 s6, {L*D*2}
    s_mov_b32 s7, 0x20000
    s_mov_b32 s10, {D*F*2}
    s_mov_b32 s11, 0x20000
    s_mov_b32 s14, {D*F*2}
    s_mov_b32 s15, 0x20000
    s_mov_b32 s18, {WS_H_SIZE}
    s_mov_b32 s19, 0x20000
    """)
    def dma_x(kb, stage):
        gs = []
        for n in range(4):
            g = []
            if n == 0:
                g.append(f"s_lshl_b32 s38, {kb}, 7")
                g.append(f"s_add_u32 s38, s38, s31")
                g.append(f"s_add_u32 m0, s33, {stage}")
            else:
                g.append(f"s_add_u32 s38, s38, {8*896}")
                g.append(f"s_add_u32 m0, m0, 1024")
            g.append("s_nop 0")
            g.append(f"buffer_load_dwordx4 {vX0 if n % 2 == 0 else vX1}, s[4:7], s38 offen lds")
            gs.append(g)
        return gs
    def dma_w(kb, par, stage):
        gs = []
        for n in range(4):
            mat, sub = n >> 1, n & 1
            g = []
            if n == 0:
                g.append(f"s_mul_i32 s39, {kb}, {64*3584}")
                g.append(f"s_add_u32 s39, s39, s30")
                if par: g.append(f"s_add_u32 s39, s39, {32*3584}")
                g.append(f"s_add_u32 s40, s39, {4*3584}")
                g.append(f"s_add_u32 m0, s32, {stage}")
            elif n == 1: g.append("s_add_u32 m0, m0, 1024")
            elif n == 2: g.append(f"s_add_u32 m0, m0, {8192-1024}")
            elif n == 3: g.append("s_add_u32 m0, m0, 1024")
            g.append("s_nop 0")
            g.append(f"buffer_load_dwordx4 {vW}, s[{8+4*mat}:{11+4*mat}], {'s39' if sub == 0 else 's40'} offen lds")
            gs.append(g)
        return gs
    S0, S1, ACC = 32, 56, 128
    def frag_reads(st, s, sp):
        r = []
        for tt in range(2):
            r.append(f"ds_read_b128 v[{st+16+4*tt}:{st+19+4*tt}], {vB[sp]} offset:{4096*tt}")
        for mat in range(2):
            for ee in range(2):
                b = st + 8*mat + 4*ee
                for hr in range(2):
                    r.append(f"ds_read_b64_tr_b16 v[{b+2*hr}:{b+2*hr+1}], {vA[ee]} offset:{mat*8192 + (16*s+4*hr)*256}")
        return r
    def mfmas(st):
        r = []
        for mat in range(2):
            for ee in range(2):
                for tt in range(2):
                    d = ACC + 64*mat + 32*ee + 16*tt
                    r.append(f"v_mfma_f32_32x32x16_bf16 v[{d}:{d+15}], v[{st+8*mat+4*ee}:{st+8*mat+4*ee+3}], v[{st+16+4*tt}:{st+19+4*tt}], v[{d}:{d+15}]")
        return r
    def interleave(mf, groups):
        n = len(mf)
        for i in range(n):
            e(mf[i])
            if i < len(groups):
                for x in groups[i]: e(x)
        for g in groups[n:]:
            for x in g: e(x)
    def chunk(par, vm, first=False, dma=True):
        e(f"s_waitcnt vmcnt({vm}) lgkmcnt(0)")
        e("s_barrier")
        e(f"s_add_u32 s28, s41, {G1_WB}")
        e(f"v_add_u32 {vA[0]}, s28, {vAc[0]}")
        e(f"v_add_u32 {vA[1]}, s28, {vAc[1]}")
        rd = frag_reads(S0, 0, 2*par)
        dm = []
        if dma:
            if par == 0: dm += dma_x('s35', 's37')
            dm += dma_w('s35', par, 's36')
        if first:
            for x in rd: e(x)
            for g in dm:
                for x in g: e(x)
        else:
            groups = [rd[0:3], rd[3:6], rd[6:8], rd[8:10]]
            nd = len(dm)
            if nd == 8: groups += [dm[0]+dm[1], dm[2]+dm[3], dm[4]+dm[5], dm[6]+dm[7]]
            elif nd == 4: groups += [dm[0], dm[1], dm[2], dm[3]]
            interleave(mfmas(S1), groups)
        e("s_waitcnt lgkmcnt(0)")
        rd = frag_reads(S1, 1, 2*par+1)
        interleave(mfmas(S0), [rd[0:3], rd[3:6], rd[6:8], rd[8:10]])
        e(f"""
        s_mov_b32 s36, s41
        s_add_u32 s41, s41, 16384
        s_cmp_eq_u32 s41, 49152
        s_cselect_b32 s41, 0, s41
        """)
        if par == 1:
            for sp in range(4): e(f"v_xor_b32 {vB[sp]}, 16384, {vB[sp]}")
    e("s_mov_b32 s37, 0\ns_mov_b32 s36, 0")
    for g in dma_x('s34', 's37'):
        for x in g: e(x)
    for g in dma_w('s34', 0, 's36'):
        for x in g: e(x)
    e("s_mov_b32 s36, 16384")
    for g in dma_w('s34', 1, 's36'):
        for x in g: e(x)
    for r in range(128): e(f"v_mov_b32 v{ACC+r}, 0")
    e("s_mov_b32 s41, 0\ns_mov_b32 s36, 32768\ns_mov_b32 s37, 16384")
    def next_kb():
        e("s_add_u32 s35, s35, 1\ns_cmp_eq_u32 s35, 7\ns_cselect_b32 s35, 0, s35")
    e("s_mov_b32 s35, s34")
    next_kb()
    chunk(0, 4, first=True)
    chunk(1, 8)
    next_kb()
    e("s_xor_b32 s37, s37, 16384")
    e("s_mov_b32 s42, 5")
    a.label('L_g1_loop')
    chunk(0, 4)
    chunk(1, 8)
    next_kb()
    e("s_xor_b32 s37, s37, 16384")
    e("s_sub_u32 s42, s42, 1\ns_cmp_lg_u32 s42, 0\ns_cbranch_scc1 L_g1_loop")
    chunk(0, 4, dma=False)
    chunk(1, 0, dma=False)
    e("s_waitcnt lgkmcnt(0)")
    for m in mfmas(S1): e(m)
    e(f"""
    s_lshl_b32 s28, s23, 2
    s_lshl_b32 s29, s27, 1
    s_add_u32 s28, s28, s29
    s_mul_i32 s28, s28, 112
    s_lshl_b32 s29, s24, 3
    s_add_u32 s28, s28, s29
    s_lshl_b32 s29, s26, 2
    s_add_u32 s28, s28, s29
    s_lshl_b32 s28, s28, 10
    v_lshlrev_b32 v3, 4, v2
    """)
    for ee in range(2):
        for tt in range(2):
            g0 = ACC + 32*ee + 16*tt; u0 = g0 + 64
            for r in range(16):
                e(f"v_cvt_pk_bf16_f32 v{g0+r}, 0, v{g0+r}")
                e(f"v_cvt_pk_bf16_f32 v{u0+r}, 0, v{u0+r}")
            for r in range(0, 16, 2):
                e(f"v_pk_mul_f32 v[{g0+r}:{g0+r+1}], v[{g0+r}:{g0+r+1}], v[{u0+r}:{u0+r+1}]")
            o = 32 + 8*(2*ee+tt)
            for r in range(8):
                e(f"v_cvt_pk_bf16_f32 v{o+r}, v{g0+2*r}, v{g0+2*r+1}")
            off = (tt*112 + 2*ee)*1024
            e(f"s_add_u32 s29, s28, {off}")
            e(f"buffer_store_dwordx4 v[{o}:{o+3}], v3, s[16:19], s29 offen")
            e(f"buffer_store_dwordx4 v[{o+4}:{o+7}], v3, s[16:19], s29 offen offset:1024")
    e("s_endpgm")

def kgen(a, opt):
    e = a.e
    a.label('L_kgen')
    e(f"""
    s_sub_u32 s20, s2, 256
    s_load_dwordx4 s[4:7], s[0:1], {KA_ARE}
    s_load_dwordx4 s[8:11], s[0:1], {KA_BRE}
    s_load_dwordx4 s[12:15], s[0:1], {KA_CRE}
    s_load_dwordx2 s[16:17], s[0:1], {KA_LOGDT}
    s_load_dwordx2 s[18:19], s[0:1], {KA_WS}
    v_lshrrev_b32 v1, 6, v0
    v_and_b32 v2, 63, v0
    v_readfirstlane_b32 s21, v1
    s_lshl_b32 s22, s20, 2
    s_lshr_b32 s23, s21, 1            ; c
    s_and_b32 s24, s21, 1             ; nh
    s_lshl_b32 s25, s20, 1
    s_add_u32 s25, s25, s23           ; d
    s_lshl_b32 s26, s25, 9
    s_lshl_b32 s27, s24, 8
    s_add_u32 s26, s26, s27
    v_lshl_add_u32 v3, v2, 2, s26
    s_waitcnt lgkmcnt(0)
    s_load_dword s28, s[16:17], s22
    global_load_dword v4, v3, s[4:5]
    global_load_dword v5, v3, s[6:7]
    global_load_dword v6, v3, s[8:9]
    global_load_dword v7, v3, s[10:11]
    global_load_dword v8, v3, s[12:13]
    global_load_dword v9, v3, s[14:15]
    s_mul_i32 s30, s21, {KG_WAVE}
    v_and_b32 v10, 31, v2
    v_mul_u32_u24 v10, 272, v10
    v_lshrrev_b32 v11, 5, v2
    v_lshl_add_u32 v10, v11, 4, v10
    v_add_u32 v10, s30, v10
    """)
    ACC = 16
    for r in range(16): e(f"v_mov_b32 v{ACC+r}, 0")
    e(f"""
    s_waitcnt lgkmcnt(0)
    s_lshl_b32 s29, s28, 16
    s_and_b32 s28, s28, 0xffff0000
    s_cmp_eq_u32 s23, 0
    s_cselect_b32 s28, s29, s28
    v_mov_b32 v12, s28
    v_mul_f32 v12, 0x3fb8aa3b, v12
    v_exp_f32 v12, v12
    s_nop 0
    v_cvt_pk_bf16_f32 v12, 0, v12
    s_mov_b32 s31, 2
    s_waitcnt vmcnt(0)
    """)
    a.label('L_kg_round')
    Bp, Cp, K, E1, E8, E256, T, X = 32, 34, 36, 38, 40, 42, 44, 46
    H0, H2, H4, H6 = 48, 50, 52, 54
    Y, T2 = 56, 58
    def cmul(D, X_, W, tmp):
        e(f"v_pk_mul_f32 v[{tmp}:{tmp+1}], v[{X_}:{X_+1}], v[{W}:{W+1}] op_sel:[0,0] op_sel_hi:[1,0]")
        e(f"v_pk_fma_f32 v[{D}:{D+1}], v[{X_}:{X_+1}], v[{W}:{W+1}], v[{tmp}:{tmp+1}] op_sel:[1,1,0] op_sel_hi:[0,1,1] neg_lo:[0,1,0]")
    e(f"""
    v_lshlrev_b32 v60, 16, v4
    v_lshlrev_b32 v61, 16, v5
    v_lshlrev_b32 v{Bp}, 16, v6
    v_lshlrev_b32 v{Bp+1}, 16, v7
    v_lshlrev_b32 v{Cp}, 16, v8
    v_lshlrev_b32 v{Cp+1}, 16, v9
    v_mul_f32 v60, v12, v60
    v_mul_f32 v61, v12, v61
    v_mul_f32 v{Bp}, v12, v{Bp}
    v_mul_f32 v{Bp+1}, v12, v{Bp+1}
    v_mul_f32 v60, 0x3fb8aa3b, v60
    v_mul_f32 v61, 0.15915494, v61
    """)
    cmul(K, Cp, Bp, T)
    for (E, m) in ((E1, 1.0), (E8, 8.0), (E256, 256.0)):
        lit = {1.0: None, 8.0: '0x41000000', 256.0: '0x43800000'}[m]
        if lit:
            e(f"v_mul_f32 v62, {lit}, v60\nv_mul_f32 v63, {lit}, v61\nv_fract_f32 v63, v63\nv_exp_f32 v62, v62")
        else:
            e(f"v_fract_f32 v63, v61\nv_exp_f32 v62, v60")
        e(f"v_cos_f32 v{E}, v63\nv_sin_f32 v{E+1}, v63")
        e(f"v_mul_f32 v{E}, v62, v{E}\nv_mul_f32 v{E+1}, v62, v{E+1}")
    for r in range(4, 10): e(f"v_lshrrev_b32 v{r}, 16, v{r}")
    e("s_mov_b32 m0, s30")
    cnt = [0]
    TMPS = [64, 65, 66, 67]
    def wrA(row, R):
        t = TMPS[cnt[0] % 4]; cnt[0] += 1
        e(f"v_cvt_pk_bf16_f32 v{t}, v{R}, -v{R+1}")
        e(f"ds_write_addtid_b32 v{t} offset:{row*272}")
    def wrB(row, R):
        t = TMPS[cnt[0] % 4]; cnt[0] += 1
        e(f"v_cvt_pk_bf16_f32 v{t}, v{R}, v{R+1}")
        e(f"ds_write_addtid_b32 v{t} offset:{KG_B + row*272}")
    wrA(0, K)
    cmul(X, K, E1, T); wrA(1, X)
    cmul(H2, X, E1, T); wrA(2, H2)
    cmul(X, H2, E1, T); wrA(3, X)
    cmul(H4, X, E1, T); wrA(4, H4)
    cmul(X, H4, E1, T); wrA(5, X)
    cmul(H6, X, E1, T); wrA(6, H6)
    cmul(X, H6, E1, T); wrA(7, X)
    cmul(K, K, E256, T); wrA(8, K)
    cmul(H2, H2, E256, T2); wrA(9, H2)
    cmul(H4, H4, E256, T); wrA(10, H4)
    cmul(H6, H6, E256, T2); wrA(11, H6)
    cmul(K, K, E256, T); wrA(12, K)
    cmul(H4, H4, E256, T2); wrA(13, H4)
    cmul(K, K, E256, T); wrA(14, K)
    cmul(H4, H4, E256, T2); wrA(15, H4)
    for row in range(16, 21):
        cmul(K, K, E256, T); wrA(row, K)
    E16 = E1
    cmul(E16, E8, E8, T)
    e(f"v_mov_b32 v{X}, 1.0\nv_mov_b32 v{X+1}, 0")
    e(f"v_mov_b32 v{Y}, v{E8}\nv_mov_b32 v{Y+1}, v{E8+1}")
    wrB(0, X); wrB(1, Y)
    for b in range(2, 32, 2):
        cmul(X, X, E16, T); cmul(Y, Y, E16, T2)
        wrB(b, X); wrB(b+1, Y)
    FA, FB = 72, 104
    for s in range(8):
        e(f"ds_read_b128 v[{FA+4*s}:{FA+4*s+3}], v10 offset:{32*s}")
        e(f"ds_read_b128 v[{FB+4*s}:{FB+4*s+3}], v10 offset:{KG_B + 32*s}")
    for s in range(8):
        e(f"s_waitcnt lgkmcnt({min(15, 14-2*s)})")
        e(f"v_mfma_f32_32x32x16_bf16 v[{ACC}:{ACC+15}], v[{FA+4*s}:{FA+4*s+3}], v[{FB+4*s}:{FB+4*s+3}], v[{ACC}:{ACC+15}]")
    e("s_sub_u32 s31, s31, 1\ns_cmp_lg_u32 s31, 0\ns_cbranch_scc1 L_kg_round")
    e(f"""
    v_lshlrev_b32 v11, 4, v2
    s_cmp_eq_u32 s24, 0
    s_cbranch_scc1 L_kg_skipw
    v_add_u32 v13, s30, v11
    s_nop 15
    """)
    for i in range(4):
        e(f"ds_write_b128 v13, v[{ACC+4*i}:{ACC+4*i+3}] offset:{1024*i}")
    e("s_waitcnt lgkmcnt(0)")
    a.label('L_kg_skipw')
    e("s_barrier")
    e(f"""
    s_cmp_eq_u32 s24, 0
    s_cbranch_scc0 L_kg_done
    s_add_u32 s30, s30, {KG_WAVE}
    v_add_u32 v13, s30, v11
    """)
    for i in range(3):
        e(f"ds_read_b128 v[{72+4*i}:{75+4*i}], v13 offset:{1024*i}")
    e(f"""
    s_add_u32 s18, s18, {WS_K2}
    s_addc_u32 s19, s19, 0
    s_lshl_b32 s26, s25, 11
    v_and_b32 v14, 31, v2
    v_lshlrev_b32 v14, 6, v14
    v_lshrrev_b32 v15, 5, v2
    v_lshl_add_u32 v14, v15, 3, v14
    v_add_u32 v14, s26, v14
    s_waitcnt lgkmcnt(0)
    """)
    for r in range(12):
        e(f"v_add_f32 v{72+r}, v{ACC+r}, v{72+r}")
    for q in range(3):
        e(f"v_cvt_pk_bf16_f32 v{90+2*q}, v{72+4*q}, v{72+4*q+1}")
        e(f"v_cvt_pk_bf16_f32 v{91+2*q}, v{72+4*q+2}, v{72+4*q+3}")
        e(f"global_store_dwordx2 v14, v[{90+2*q}:{91+2*q}], s[18:19] offset:{16*q}")
    a.label('L_kg_done')
    e("s_endpgm")

def load_rows_dma(e, srd, soff_reg, stride_lds_fn, wave_reg, nrows_per_wave):
    pass

def p1(a, opt):
    e = a.e
    a.label('L_p1')
    e(f"""
    s_sub_u32 s20, s2, 224
    s_load_dwordx2 s[4:5], s[0:1], {KA_U}
    s_load_dwordx2 s[8:9], s[0:1], {KA_GW}
    s_load_dwordx2 s[12:13], s[0:1], {KA_WS}
    v_lshrrev_b32 v1, 6, v0
    v_and_b32 v2, 63, v0
    v_readfirstlane_b32 s21, v1
    v_lshlrev_b32 v3, 4, v2           ; lane*16
    s_mul_i32 s22, s20, {64*896}
    s_mul_i32 s23, s21, {16*896}
    s_add_u32 s22, s22, s23
    s_mul_i32 s24, s21, {16*896+32}
    s_waitcnt lgkmcnt(0)
    s_mov_b32 s6, {L*D*2}
    s_mov_b32 s7, 0x20000
    s_mov_b32 s10, {D*2}
    s_mov_b32 s11, 0x20000
    s_mov_b32 exec_lo, -1
    s_mov_b32 exec_hi, 0x00ffffff
    """)
    for r in range(16):
        e(f"s_add_u32 m0, s24, {r*896 + (r>>3)*16}")
        e(f"s_add_u32 s25, s22, {r*896}")
        e(f"buffer_load_dwordx4 v3, s[4:7], s25 offen lds")
    e("s_mov_b64 exec, -1")
    e(f"""
    v_and_b32 v4, 3, v0
    v_lshlrev_b32 v4, 4, v4
    """)
    GW = 64
    for m in range(14):
        e(f"buffer_load_dwordx4 v[{GW+4*m}:{GW+4*m+3}], v4, s[8:11], 0 offen offset:{64*m}")
    e(f"""
    v_lshrrev_b32 v5, 2, v0           ; token
    v_lshrrev_b32 v6, 3, v5
    v_mul_u32_u24 v7, 896, v5
    v_lshl_add_u32 v7, v6, 4, v7
    v_add_u32 v7, v7, v4
    v_mov_b32 v8, 0
    v_mov_b32 v9, 0x3f803f80
    s_waitcnt vmcnt(0)
    s_barrier
    """)
    for m in range(14):
        e(f"ds_read_b128 v[{128+4*m}:{128+4*m+3}], v7 offset:{64*m}")
    for m in range(14):
        e(f"s_waitcnt lgkmcnt({min(15,13-m)})")
        for k in range(4):
            x = 128+4*m+k; g = GW+4*m+k
            e(f"""
            v_lshlrev_b32 v10, 16, v{x}
            v_and_b32 v11, 0xffff0000, v{x}
            v_lshlrev_b32 v12, 16, v{g}
            v_and_b32 v13, 0xffff0000, v{g}
            v_pk_mul_f32 v[10:11], v[10:11], v[12:13]
            v_cvt_pk_bf16_f32 v10, v10, v11
            v_dot2c_f32_bf16 v8, v10, v9
            """)
    e(f"""
    s_nop 3
    v_add_f32_dpp v8, v8, v8 quad_perm:[1,0,3,2] row_mask:0xf bank_mask:0xf
    s_nop 1
    v_add_f32_dpp v8, v8, v8 quad_perm:[2,3,0,1] row_mask:0xf bank_mask:0xf
    v_cvt_pk_bf16_f32 v8, 0, v8
    v_mul_f32 v8, 0xbfb8aa3b, v8
    v_exp_f32 v8, v8
    v_add_f32 v8, 1.0, v8
    v_rcp_f32 v8, v8
    v_cvt_pk_bf16_f32 v8, 0, v8
    s_add_u32 s14, s12, {WS_G}
    s_addc_u32 s15, s13, 0
    s_lshl_b32 s26, s20, 8
    v_lshl_add_u32 v10, v5, 2, s26
    v_and_b32 v11, 3, v0
    v_cmp_eq_u32 vcc, 0, v11
    s_and_saveexec_b64 s[28:29], vcc
    global_store_dword v10, v8, s[14:15]
    s_mov_b64 exec, s[28:29]
    """)
    e(f"""
    v_and_b32 v4, 7, v2
    v_lshrrev_b32 v5, 3, v2
    v_mul_u32_u24 v6, {8*896+16}, v4
    s_mul_i32 s26, s21, 56
    v_add_u32 v5, s26, v5
    v_lshl_add_u32 v6, v5, 2, v6
    v_lshlrev_b32 v7, 13, v5          ; 2cp*4096
    v_lshl_add_u32 v7, v4, 4, v7      ; + o*16
    s_lshl_b32 s26, s20, 7
    v_add_u32 v7, s26, v7             ; + p*128
    s_add_u32 s12, s12, {WS_UT}
    s_addc_u32 s13, s13, 0
    s_mov_b32 s30, 0x05040100
    s_mov_b32 s31, 0x07060302
    s_mov_b32 s32, 7
    """)
    a.label('L_p1_tr')
    for r in range(8):
        e(f"ds_read_b32 v{16+r}, v6 offset:{r*896}")
    e("s_waitcnt lgkmcnt(0)")
    for k in range(4):
        e(f"v_perm_b32 v{24+k}, v{17+2*k}, v{16+2*k}, s30")
        e(f"v_perm_b32 v{28+k}, v{17+2*k}, v{16+2*k}, s31")
    e(f"""
    global_store_dwordx4 v7, v[24:27], s[12:13]
    v_add_u32 v12, 4096, v7
    global_store_dwordx4 v12, v[28:31], s[12:13]
    v_add_u32 v6, 32, v6
    v_add_u32 v7, {16*4096}, v7
    s_sub_u32 s32, s32, 1
    s_cmp_lg_u32 s32, 0
    s_cbranch_scc1 L_p1_tr
    s_endpgm
    """)

def p2(a, opt):
    e = a.e
    a.label('L_p2')
    e(f"""
    s_sub_u32 s20, s2, 480
    s_load_dwordx2 s[4:5], s[0:1], {KA_WD}
    s_load_dwordx2 s[12:13], s[0:1], {KA_WS}
    v_lshrrev_b32 v1, 6, v0
    v_and_b32 v2, 63, v0
    v_readfirstlane_b32 s21, v1
    v_lshlrev_b32 v3, 4, v2
    s_mul_i32 s22, s20, {64*896}
    s_mul_i32 s23, s21, {16*896}
    s_add_u32 s22, s22, s23
    s_mul_i32 s24, s21, {16*960}
    s_waitcnt lgkmcnt(0)
    s_mov_b32 s6, {F*D*2}
    s_mov_b32 s7, 0x20000
    s_mov_b32 exec_lo, -1
    s_mov_b32 exec_hi, 0x00ffffff
    """)
    for r in range(16):
        e(f"s_add_u32 m0, s24, {r*960}")
        e(f"s_add_u32 s25, s22, {r*896}")
        e(f"buffer_load_dwordx4 v3, s[4:7], s25 offen lds")
    e("s_mov_b64 exec, -1")
    e(f"""
    v_lshrrev_b32 v4, 5, v2           ; hh
    v_bfe_u32 v5, v2, 2, 2            ; jj
    v_lshl_add_u32 v4, v4, 2, v5
    s_lshl_b32 s26, s21, 4
    v_add_u32 v4, s26, v4
    v_mul_u32_u24 v4, 960, v4
    v_bfe_u32 v5, v2, 4, 1            ; cb
    v_lshl_add_u32 v4, v5, 5, v4
    v_and_b32 v5, 3, v2
    v_lshl_add_u32 v4, v5, 3, v4
    s_add_u32 s12, s12, {WS_WD}
    s_addc_u32 s13, s13, 0
    s_lshl_b32 s26, s20, 2
    s_add_u32 s26, s26, s21           ; ks
    s_lshl_b32 s26, s26, 10
    v_add_u32 v6, s26, v3
    s_waitcnt vmcnt(0)
    s_barrier
    """)
    for nt in range(14):
        b = 16 + 4*nt
        e(f"ds_read_b64_tr_b16 v[{b}:{b+1}], v4 offset:{nt*64}")
        e(f"ds_read_b64_tr_b16 v[{b+2}:{b+3}], v4 offset:{nt*64 + 8*960}")
    for nt in range(14):
        b = 16 + 4*nt
        e(f"s_waitcnt lgkmcnt({min(15, 26-2*nt)})")
        e(f"global_store_dwordx4 v6, v[{b}:{b+3}], s[12:13]")
        if nt < 13: e(f"v_add_u32 v6, {112*1024}, v6")
    e("s_endpgm")

def kernel_a(opt):
    a = Asm(); e = a.e
    e(".globl ka_kernel\n.p2align 8\n.type ka_kernel,@function")
    a.label('ka_kernel')
    e("""
    s_cmp_lt_u32 s2, 224
    s_cbranch_scc1 L_gemm1
    s_cmp_lt_u32 s2, 256
    s_cbranch_scc1 L_p1
    s_cmp_lt_u32 s2, 480
    s_cbranch_scc1 L_kgen
    s_cmp_lt_u32 s2, 508
    s_cbranch_scc1 L_p2
    s_endpgm
    """)
    gemm1(a, opt); kgen(a, opt); p1(a, opt); p2(a, opt)
    return a
```

```python
from asmlib import Asm
from common import *

CV_UC = [0, 16640]; CV_KR = [33280, 37888]; CV_TB = [42496, 44544]; CV_EX = 46592
G2_RED = 0
G2_OUT = 49152

def gemm2(a, opt):
    e = a.e
    DEPTH = opt.get('g2depth', 10)
    ROT = opt.get('rot2', 0)
    a.label('L_gemm2')
    e(f"""
    s_load_dwordx2 s[4:5], s[0:1], {KA_WS}
    s_load_dwordx2 s[16:17], s[0:1], {KA_OUT}
    s_load_dwordx2 s[18:19], s[0:1], {KA_DBG}
    s_and_b32 s20, s2, 7
    s_lshr_b32 s21, s2, 3
    s_and_b32 s22, s21, 3
    s_lshl_b32 s20, s20, 2
    s_add_u32 s22, s22, s20
    s_lshr_b32 s23, s21, 2
    v_lshrrev_b32 v1, 6, v0
    v_and_b32 v2, 63, v0
    v_readfirstlane_b32 s24, v1       ; wave
    v_lshlrev_b32 v3, 4, v2           ; lane*16
    s_mul_i32 s25, s22, {2*112*1024}
    s_mul_i32 s26, s24, {28*1024}
    s_add_u32 s25, s25, s26
    s_add_u32 s27, s25, {112*1024}    ; h tile1
    s_mul_i32 s28, s23, {2*112*1024}
    s_add_u32 s28, s28, s26
    s_add_u32 s29, s28, {112*1024}
    s_waitcnt lgkmcnt(0)
    s_add_u32 s8, s4, {WS_WD}
    s_addc_u32 s9, s5, 0
    s_mov_b32 s10, {WS_WD_SIZE}
    s_mov_b32 s11, 0x20000
    s_mov_b32 s12, s4
    s_mov_b32 s13, s5
    s_mov_b32 s14, {WS_H_SIZE}
    s_mov_b32 s15, 0x20000
    """)
    if ROT:
        e(f"""
        s_mul_i32 s30, s23, {ROT}
        s_add_u32 s30, s30, s21
        s_mul_i32 s31, s30, 9363
        s_lshr_b32 s31, s31, 16
        s_mul_i32 s31, s31, 7
        s_sub_u32 s30, s30, s31
        """)
    else:
        e("s_mov_b32 s30, 0")
    ACC = 0 + 16
    RING = 80
    def ring(n): return RING + 16*(n % DEPTH)
    def loads(n):
        out = []
        if n % 4 == 0:
            out.append(f"s_lshl_b32 s31, s30, 12")
            out.append(f"s_add_u32 s32, s25, s31")
            out.append(f"s_add_u32 s33, s27, s31")
            out.append(f"s_add_u32 s34, s28, s31")
            out.append(f"s_add_u32 s35, s29, s31")
            out.append(f"s_add_u32 s30, s30, 1")
            out.append(f"s_cmp_eq_u32 s30, 7")
            out.append(f"s_cselect_b32 s30, 0, s30")
        r = ring(n); o = (n % 4)*1024
        out.append(f"buffer_load_dwordx4 v[{r}:{r+3}], v3, s[12:15], s32 offen offset:{o}")
        out.append(f"buffer_load_dwordx4 v[{r+8}:{r+11}], v3, s[8:11], s34 offen offset:{o}")
        out.append(f"buffer_load_dwordx4 v[{r+4}:{r+7}], v3, s[12:15], s33 offen offset:{o}")
        out.append(f"buffer_load_dwordx4 v[{r+12}:{r+15}], v3, s[8:11], s35 offen offset:{o}")
        return out
    for n in range(DEPTH):
        for x in loads(n): e(x)
    for r in range(64): e(f"v_mov_b32 v{ACC+r}, 0")
    for n in range(28):
        rem = min(DEPTH, 28 - n)
        e(f"s_waitcnt vmcnt({4*(rem-1)})")
        r = ring(n)
        for tt in range(2):
            for nt in range(2):
                d = ACC + 32*tt + 16*nt
                e(f"v_mfma_f32_32x32x16_bf16 v[{d}:{d+15}], v[{r+4*tt}:{r+4*tt+3}], v[{r+8+4*nt}:{r+8+4*nt+3}], v[{d}:{d+15}]")
        if n + DEPTH < 28:
            for x in loads(n + DEPTH): e(x)
    e(f"""
    s_lshr_b32 s36, s24, 1            ; tt
    s_and_b32 s37, s24, 1             ; nt
    """)
    e(f"""
    s_add_u32 s38, s4, {WS_G}
    s_addc_u32 s39, s5, 0
    s_lshl_b32 s40, s22, 6
    s_lshl_b32 s41, s36, 5
    s_add_u32 s40, s40, s41
    v_lshrrev_b32 v4, 5, v2           ; hh
    v_lshlrev_b32 v5, 4, v4
    s_lshl_b32 s41, s40, 2
    v_add_u32 v5, s41, v5
    """)
    GV = 96
    for q in range(4):
        e(f"global_load_dwordx4 v[{GV+4*q}:{GV+4*q+3}], v5, s[38:39] offset:{32*q}")
    for t in range(4):
        e(f"s_cmp_eq_u32 s24, {t}\ns_cbranch_scc1 L_g2_skip{t}")
        e(f"s_sub_u32 s31, s24, {t+1}\ns_and_b32 s31, s31, 3\ns_lshl_b32 s31, s31, 12\ns_add_u32 s31, s31, {G2_RED + t*12288}")
        e(f"v_add_u32 v6, s31, v3")
        for i in range(4):
            e(f"ds_write_b128 v6, v[{ACC+16*t+4*i}:{ACC+16*t+4*i+3}] offset:{1024*i}")
        a.label(f'L_g2_skip{t}')
    e("s_waitcnt lgkmcnt(0)\ns_barrier")
    e(f"s_mul_i32 s31, s24, 12288\nv_add_u32 v6, s31, v3")
    RD = 112
    for sl in range(3):
        for i in range(4):
            e(f"ds_read_b128 v[{RD+16*sl+4*i}:{RD+16*sl+4*i+3}], v6 offset:{G2_RED + sl*4096 + 1024*i}")
    OWN = 160
    for t in range(4):
        e(f"s_cmp_eq_u32 s24, {t}\ns_cbranch_scc0 L_g2_own{t}")
        for r in range(16): e(f"v_mov_b32 v{OWN+r}, v{ACC+16*t+r}")
        a.label(f'L_g2_own{t}')
    e("s_waitcnt lgkmcnt(0)")
    for r in range(16):
        e(f"v_add_f32 v{OWN+r}, v{OWN+r}, v{RD+r}")
        e(f"v_add_f32 v{RD+16+r}, v{RD+16+r}, v{RD+32+r}")
    for r in range(16):
        e(f"v_add_f32 v{OWN+r}, v{OWN+r}, v{RD+16+r}")
    e(f"""
    s_lshl_b32 s31, s23, 5
    v_mov_b32 v7, s31
    s_mov_b32 s42, 0x100000
    """)
    a.label('L_g2_poll')
    e(f"""
    global_load_dword v8, v7, s[18:19] sc1
    s_waitcnt vmcnt(0)
    v_readfirstlane_b32 s43, v8
    s_cmp_ge_u32 s43, 32
    s_cbranch_scc1 L_g2_ready
    s_sleep 2
    s_sub_u32 s42, s42, 1
    s_cmp_lg_u32 s42, 0
    s_cbranch_scc1 L_g2_poll
    """)
    a.label('L_g2_ready')
    e(f"""
    s_add_u32 s44, s4, {WS_AT}
    s_addc_u32 s45, s5, 0
    s_lshl_b32 s31, s23, 6
    s_lshl_b32 s41, s37, 5
    s_add_u32 s31, s31, s41
    v_and_b32 v8, 31, v2
    v_add_u32 v8, s31, v8
    v_lshlrev_b32 v8, 12, v8
    v_lshl_add_u32 v8, v4, 3, v8
    s_lshl_b32 s41, s40, 1
    v_add_u32 v8, s41, v8
    """)
    AV = 176
    for q in range(4):
        e(f"global_load_dwordx2 v[{AV+2*q}:{AV+2*q+1}], v8, s[44:45] offset:{16*q} sc1")
    e(f"""
    v_and_b32 v9, 31, v2
    s_lshl_b32 s41, s37, 5
    v_add_u32 v9, s41, v9
    v_lshlrev_b32 v9, 1, v9
    s_lshl_b32 s41, s36, 5
    v_lshl_add_u32 v10, v4, 2, s41
    v_mul_u32_u24 v10, 144, v10
    v_add_u32 v9, v9, v10
    s_waitcnt vmcnt(0)
    """)
    for q in range(4):
        for i in range(4):
            r = 4*q + i
            av = AV + 2*q + (i >> 1)
            g = GV + 4*q + i
            if i & 1: e(f"v_and_b32 v11, 0xffff0000, v{av}")
            else: e(f"v_lshlrev_b32 v11, 16, v{av}")
            e(f"""
            v_cvt_pk_bf16_f32 v12, 0, v{OWN+r}
            v_sub_f32 v13, 1.0, v{g}
            v_mul_f32 v11, v{g}, v11
            v_cvt_pk_bf16_f32 v13, 0, v13
            v_cvt_pk_bf16_f32 v11, 0, v11
            v_mul_f32 v12, v13, v12
            v_cvt_pk_bf16_f32 v12, 0, v12
            v_add_f32 v11, v11, v12
            v_cvt_pk_bf16_f32 v11, v11, v11
            ds_write_b16 v9, v11 offset:{G2_OUT + (8*q+i)*144}
            """)
    e("s_waitcnt lgkmcnt(0)\ns_barrier")
    e(f"""
    v_lshrrev_b32 v4, 3, v0
    v_and_b32 v5, 7, v0
    v_mul_u32_u24 v6, 144, v4
    v_lshl_add_u32 v6, v5, 4, v6
    ds_read_b128 v[12:15], v6 offset:{G2_OUT}
    ds_read_b128 v[16:19], v6 offset:{G2_OUT + 32*144}
    s_lshl_b32 s31, s22, 6
    v_add_u32 v4, s31, v4
    v_mul_u32_u24 v4, 896, v4
    v_lshl_add_u32 v4, v5, 4, v4
    s_lshl_b32 s31, s23, 7
    v_add_u32 v4, s31, v4
    v_add_u32 v5, {32*896}, v4
    s_waitcnt lgkmcnt(1)
    global_store_dwordx4 v4, v[12:15], s[16:17]
    s_waitcnt lgkmcnt(0)
    global_store_dwordx4 v5, v[16:19], s[16:17]
    s_endpgm
    """)

def conv(a, opt):
    e = a.e
    a.label('L_conv')
    e(f"""
    s_sub_u32 s20, s2, 224            ; kq
    s_load_dwordx2 s[4:5], s[0:1], {KA_WS}
    s_load_dwordx2 s[16:17], s[0:1], {KA_DSKIP}
    s_load_dwordx2 s[18:19], s[0:1], {KA_DBG}
    v_lshrrev_b32 v1, 6, v0
    v_and_b32 v2, 63, v0
    v_readfirstlane_b32 s21, v1       ; wave
    s_lshr_b32 s22, s21, 1            ; c
    s_and_b32 s23, s21, 1             ; kh
    s_lshl_b32 s24, s20, 1
    s_add_u32 s24, s24, s22           ; d
    s_lshl_b32 s25, s20, 2
    v_and_b32 v3, 127, v0
    s_waitcnt lgkmcnt(0)
    s_load_dword s26, s[16:17], s25
    s_add_u32 s6, s4, {WS_UT}
    s_addc_u32 s7, s5, 0
    s_add_u32 s8, s4, {WS_K2}
    s_addc_u32 s9, s5, 0
    s_add_u32 s10, s4, {WS_AT}
    s_addc_u32 s11, s5, 0
    s_lshl_b32 s27, s24, 12           ; d*4096
    v_lshlrev_b32 v4, 5, v3           ; 32 t
    v_add_u32 v5, s27, v4
    v_subrev_u32 v6, 8, v4
    v_max_i32 v6, 0, v6
    v_add_u32 v6, s27, v6
    global_load_dwordx2 v[16:17], v6, s[6:7]
    global_load_dwordx4 v[18:21], v5, s[6:7]
    global_load_dwordx4 v[22:25], v5, s[6:7] offset:16
    s_lshl_b32 s28, s20, 12
    v_lshl_add_u32 v7, v0, 4, s28
    global_load_dwordx4 v[28:31], v7, s[8:9]
    """)
    IDX = 40
    e("v_lshlrev_b32 v8, 3, v0\nv_sub_u32 v8, 2047, v8")
    for i in range(8):
        e(f"""
        v_subrev_u32 v9, {i}, v8
        v_cvt_f32_u32 v9, v9
        v_cvt_pk_bf16_f32 v9, 0, v9
        v_cvt_u32_f32 v9, v9
        v_lshrrev_b32 v10, 8, v9
        v_lshlrev_b32 v11, 3, v10
        v_lshl_add_u32 v12, v10, 2, 4
        v_lshl_add_u32 v13, v10, 1, 8
        v_min_u32 v11, v11, v12
        v_add_u32 v12, 12, v10
        v_min3_u32 v11, v11, v12, v13
        v_min_u32 v10, 2, v10
        v_and_b32 v12, 7, v9
        v_lshrrev_b32 v12, v10, v12
        v_add_u32 v11, v11, v12
        v_bfe_u32 v12, v9, 3, 5
        v_lshlrev_b32 v12, 6, v12
        v_lshl_add_u32 v{IDX+i}, v11, 1, v12
        """)
    e(f"""
    v_mov_b32 v32, 0
    v_mov_b32 v33, 0
    v_mov_b32 v34, 0
    v_mov_b32 v35, 0
    v_and_b32 v9, 31, v0
    v_lshlrev_b32 v9, 4, v9
    v_bfe_u32 v10, v0, 5, 1
    v_mul_u32_u24 v10, {CV_KR[1]-CV_KR[0]}, v10
    v_add_u32 v9, v9, v10
    v_cmp_gt_u32 vcc, 64, v0
    s_and_saveexec_b64 s[30:31], vcc
    s_cbranch_execz L_cv_z1
    ds_write_b128 v9, v[32:35] offset:{CV_KR[0] + 4096}
    """)
    a.label('L_cv_z1')
    e(f"""
    s_mov_b64 exec, s[30:31]
    v_lshrrev_b32 v9, 1, v0
    v_mul_u32_u24 v9, 4160, v9
    v_and_b32 v10, 1, v0
    v_lshl_add_u32 v9, v10, 4, v9
    v_cmp_gt_u32 vcc, 16, v0
    s_and_saveexec_b64 s[30:31], vcc
    s_cbranch_execz L_cv_z2
    ds_write_b128 v9, v[32:35]
    """)
    a.label('L_cv_z2')
    e("s_mov_b64 exec, s[30:31]")
    e(f"""
    v_lshlrev_b32 v9, 4, v0
    s_waitcnt vmcnt(0)
    ds_write_b128 v9, v[28:31] offset:{CV_TB[0]}
    v_cmp_eq_u32 vcc, 0, v3
    v_cndmask_b32 v16, v16, 0, vcc
    v_cndmask_b32 v17, v17, 0, vcc
    """.replace("v_cndmask_b32 v16, v16, 0, vcc", "v_cndmask_b32 v16, v16, v32, vcc").replace("v_cndmask_b32 v17, v17, 0, vcc", "v_cndmask_b32 v17, v17, v32, vcc"))
    for i in range(9):
        e(f"v_alignbit_b32 v{48+i}, v{17+i}, v{16+i}, 16")
    e(f"""
    s_mul_i32 s29, s22, {CV_UC[1]}
    v_lshl_add_u32 v10, v3, 5, s29
    ds_write_b128 v10, v[48:51] offset:{32}
    ds_write_b128 v10, v[52:55] offset:{32+16}
    ds_write_b128 v10, v[18:21] offset:{3*4160+32}
    ds_write_b128 v10, v[22:25] offset:{3*4160+32+16}
    v_add_u32 v11, {4160+32}, v10
    v_add_u32 v12, {2*4160+32}, v10
    """)
    for k in range(4):
        e(f"ds_write2_b32 v11, v{17+2*k}, v{18+2*k} offset0:{2*k} offset1:{2*k+1}")
        e(f"ds_write2_b32 v12, v{49+2*k}, v{50+2*k} offset0:{2*k} offset1:{2*k+1}")
    e("s_waitcnt lgkmcnt(0)\ns_barrier")
    for c in range(2):
        for i in range(8):
            e(f"ds_read_u16 v{64+8*c+i}, v{IDX+i} offset:{CV_TB[c]}")
    e("v_lshlrev_b32 v9, 4, v0")
    for c in range(2):
        e(f"s_waitcnt lgkmcnt({8 if c == 0 else 0})")
        for k in range(4):
            e(f"v_lshl_or_b32 v{60+k}, v{64+8*c+2*k+1}, 16, v{64+8*c+2*k}")
        e(f"ds_write_b128 v9, v[60:63] offset:{CV_KR[c]}")
    e(f"""
    v_and_b32 v10, 15, v2             ; b / a0
    v_lshrrev_b32 v11, 4, v2          ; q
    v_and_b32 v12, 3, v10
    v_mul_u32_u24 v12, 4160, v12
    v_lshrrev_b32 v13, 2, v10
    v_lshl_add_u32 v12, v13, 3, v12
    v_lshl_add_u32 v12, v11, 4, v12
    s_lshl_b32 s30, s23, 8
    s_add_u32 s31, s29, s30
    s_add_u32 s31, s31, 8
    v_add_u32 v12, s31, v12           ; vY
    s_mul_i32 s31, s22, {CV_KR[1]-CV_KR[0]}
    s_add_u32 s31, s31, {CV_KR[0] + 4064 - 3584}
    s_add_u32 s31, s31, s30
    v_lshlrev_b32 v13, 5, v10
    v_sub_u32 v13, s31, v13
    v_lshl_add_u32 v13, v11, 4, v13   ; vX
    s_waitcnt lgkmcnt(0)
    s_barrier
    """)
    ACC = 16; FY = [64, 128]; FX = [96, 160]
    for r in range(32): e(f"v_mov_b32 v{ACC+r}, 0")
    def reads(bufi, it):
        out = []
        for i in range(8):
            y = FY[bufi] + 4*i
            out.append(f"ds_read_b64 v[{y}:{y+1}], v12 offset:{512*i + 64*it}")
            out.append(f"ds_read_b64 v[{y+2}:{y+3}], v12 offset:{512*i + 64*it + 8}")
            x = FX[bufi] + 4*i
            out.append(f"ds_read_b128 v[{x}:{x+3}], v13 offset:{3584 - 512*i + 64*it}")
        return out
    for x in reads(0, 0): e(x)
    for it in range(4):
        b = it & 1
        e("s_waitcnt lgkmcnt(0)")
        nxt = reads(1 - b, it + 1) if it < 3 else []
        mf = []
        for i in range(8):
            for j in range(8 - i):
                t = i + j
                mf.append(f"v_mfma_f32_16x16x32_bf16 v[{ACC+4*t}:{ACC+4*t+3}], v[{FY[b]+4*i}:{FY[b]+4*i+3}], v[{FX[b]+4*j}:{FX[b]+4*j+3}], v[{ACC+4*t}:{ACC+4*t+3}]")
        for k, m in enumerate(mf):
            e(m)
            if k < len(nxt): e(nxt[k])
    e(f"""
    v_lshlrev_b32 v14, 4, v2
    s_lshl_b32 s31, s21, 12
    s_add_u32 s31, s31, {CV_EX}
    v_add_u32 v15, s31, v14
    s_xor_b32 s32, s21, 1
    s_lshl_b32 s32, s32, 12
    s_add_u32 s32, s32, {CV_EX}
    v_add_u32 v14, s32, v14
    s_cmp_eq_u32 s23, 0
    s_cbranch_scc1 L_cv_x0
    """)
    for i in range(4): e(f"ds_write_b128 v15, v[{ACC+4*i}:{ACC+4*i+3}] offset:{1024*i}")
    for r in range(16): e(f"v_mov_b32 v{ACC+r}, v{ACC+16+r}")
    e("s_branch L_cv_x1")
    a.label('L_cv_x0')
    for i in range(4): e(f"ds_write_b128 v15, v[{ACC+16+4*i}:{ACC+16+4*i+3}] offset:{1024*i}")
    a.label('L_cv_x1')
    e("s_waitcnt lgkmcnt(0)\ns_barrier")
    for i in range(4): e(f"ds_read_b128 v[{64+4*i}:{64+4*i+3}], v14 offset:{1024*i}")
    e(f"""
    v_lshlrev_b32 v9, 5, v10          ; 32 a0
    v_lshl_add_u32 v9, v11, 3, v9     ; + 8 q4
    s_lshl_b32 s31, s23, 11
    v_add_u32 v9, s31, v9
    s_add_u32 s32, s29, {3*4160+32}
    v_add_u32 v8, s32, v9
    """)
    for i in range(4): e(f"ds_read_b64 v[{96+2*i}:{97+2*i}], v8 offset:{512*i}")
    e(f"""
    s_lshl_b32 s33, s26, 16
    s_and_b32 s26, s26, 0xffff0000
    s_cmp_eq_u32 s22, 0
    s_cselect_b32 s26, s33, s26
    v_add_u32 v9, s27, v9             ; + d*4096
    s_waitcnt lgkmcnt(0)
    """)
    for t in range(4):
        for i in range(4):
            r = 4*t + i
            uv = 96 + 2*t + (i >> 1)
            if i & 1: e(f"v_and_b32 v5, 0xffff0000, v{uv}")
            else: e(f"v_lshlrev_b32 v5, 16, v{uv}")
            e(f"""
            v_add_f32 v{ACC+r}, v{ACC+r}, v{64+r}
            v_mul_f32 v5, s26, v5
            v_cvt_pk_bf16_f32 v{ACC+r}, 0, v{ACC+r}
            v_cvt_pk_bf16_f32 v5, 0, v5
            v_add_f32 v{ACC+r}, v{ACC+r}, v5
            """)
        e(f"v_cvt_pk_bf16_f32 v{104+2*t}, v{ACC+4*t}, v{ACC+4*t+1}")
        e(f"v_cvt_pk_bf16_f32 v{105+2*t}, v{ACC+4*t+2}, v{ACC+4*t+3}")
        e(f"global_store_dwordx2 v9, v[{104+2*t}:{105+2*t}], s[10:11] offset:{512*t} sc1")
    e(f"""
    s_waitcnt vmcnt(0)
    s_barrier
    s_lshr_b32 s31, s20, 5
    s_lshl_b32 s31, s31, 5
    v_mov_b32 v5, s31
    v_mov_b32 v6, 1
    v_cmp_eq_u32 vcc, 0, v0
    s_and_saveexec_b64 s[30:31], vcc
    s_cbranch_execz L_cv_end
    global_atomic_add v5, v6, s[18:19] sc1
    """)
    a.label('L_cv_end')
    e("s_endpgm")

def kernel_b(opt):
    a = Asm(); e = a.e
    e(".globl kb_kernel\n.p2align 8\n.type kb_kernel,@function")
    a.label('kb_kernel')
    e("""
    s_cmp_lt_u32 s2, 224
    s_cbranch_scc1 L_gemm2
    s_cmp_lt_u32 s2, 448
    s_cbranch_scc1 L_conv
    s_endpgm
    """)
    gemm2(a, opt); conv(a, opt)
    return a
```

```python
import sys
from gen_a import kernel_a
from gen_b import kernel_b
from common import *

HEADER = open('gated_mix__ssm_conv_s4__glu_gated_bilinear__prompt.s.ref').read().split('; Override launch geometry')[0]

def desc(name, vg, sg):
    return f""".amdhsa_kernel {name}
  .amdhsa_next_free_vgpr {vg}
  .amdhsa_next_free_sgpr {sg}
  .amdhsa_accum_offset {vg}
  .amdhsa_group_segment_fixed_size 0
  .amdhsa_kernarg_size 136
  .amdhsa_user_sgpr_count 2
  .amdhsa_user_sgpr_kernarg_segment_ptr 1
  .amdhsa_system_sgpr_workgroup_id_x 1
  .amdhsa_float_denorm_mode_32 3
.end_amdhsa_kernel
"""

def build(opt=None):
    opt = opt or {}
    ka = kernel_a(opt); kb = kernel_b(opt)
    for k in (ka, kb):
        pr = k.fix_hazards()
        for p in pr: print("BRANCH HAZARD:", p, file=sys.stderr)
    s = HEADER
    s += "; @launch kernel=ka_kernel grid=(512,1,1) block=(256,1,1) lds=81920\n"
    s += "; @launch kernel=kb_kernel grid=(448,1,1) block=(256,1,1) lds=65536\n"
    s += '.amdgcn_target "amdgcn-amd-amdhsa--gfx950"\n.text\n'
    s += ka.text() + kb.text()
    s += '.section .rodata,"a"\n.p2align 6\n' + desc('ka_kernel', 256, 64) + '.p2align 6\n' + desc('kb_kernel', 256, 64)
    return s

if __name__ == '__main__':
    out = sys.argv[1] if len(sys.argv) > 1 else 'gated_mix__ssm_conv_s4__glu_gated_bilinear__prompt.s'
    opt = {}
    for kv in sys.argv[2:]:
        k, v = kv.split('='); opt[k] = int(v)
    open(out, 'w').write(build(opt))
    print("wrote", out)
```

```python
from asmlib import Asm
from common import *

def gemm1(a, opt):
    e = a.e
    ROT = opt.get('rot1', 0)
    a.label('L_gemm1')
    e(f"""
    s_load_dwordx2 s[4:5], s[0:1], {KA_U}
    s_load_dwordx4 s[8:11], s[0:1], {KA_WG}
    s_load_dwordx2 s[16:17], s[0:1], {KA_WS}
    s_and_b32 s20, s2, 7
    s_lshr_b32 s21, s2, 3
    s_and_b32 s22, s20, 1
    s_lshr_b32 s23, s20, 1
    s_mul_i32 s23, s23, 28
    s_add_u32 s23, s23, s21
    s_lshr_b32 s24, s23, 3
    s_and_b32 s23, s23, 7
    s_lshl_b32 s22, s22, 3
    s_add_u32 s23, s23, s22
    v_lshrrev_b32 v1, 6, v0
    v_and_b32 v2, 63, v0
    v_readfirstlane_b32 s25, v1
    """)
    vW, vX0, vX1 = 'v3', 'v4', 'v5'
    vAc = ['v6', 'v7']; vA = ['v8', 'v9']; vB = ['v10', 'v11', 'v12', 'v13']
    e(f"""
    v_lshrrev_b32 v14, 4, v2          ; lane>>4
    v_bfe_u32 v15, v2, 2, 2           ; (lane>>2)&3
    v_and_b32 v16, 3, v2              ; lane&3
    v_xor_b32 v17, v15, v14
    v_lshlrev_b32 v17, 6, v17
    v_lshl_add_u32 v17, v16, 4, v17
    v_mul_u32_u24 v18, 3584, v14
    v_add_u32 {vW}, v17, v18
    v_lshrrev_b32 v17, 3, v2          ; lane>>3
    v_mul_u32_u24 v18, 896, v17
    v_and_b32 v19, 7, v2
    v_xor_b32 v20, v19, v14
    v_lshl_add_u32 {vX0}, v20, 4, v18
    v_or_b32 v20, 4, v14
    v_xor_b32 v20, v19, v20
    v_lshl_add_u32 {vX1}, v20, 4, v18
    """)
    e(f"""
    s_and_b32 s26, s25, 1             ; wf
    s_lshr_b32 s27, s25, 1            ; wt
    v_lshrrev_b32 v17, 5, v2          ; hh
    v_lshl_add_u32 v18, v17, 3, v15
    v_lshlrev_b32 v18, 8, v18
    v_and_b32 v19, 1, v14             ; cb
    v_lshl_add_u32 v18, v19, 5, v18
    v_lshl_add_u32 v18, v16, 3, v18
    s_lshl_b32 s28, s26, 1
    v_xor_b32 v19, s28, v15
    v_lshl_add_u32 {vAc[0]}, v19, 6, v18
    s_add_u32 s28, s28, 1
    v_xor_b32 v19, s28, v15
    v_lshl_add_u32 {vAc[1]}, v19, 6, v18
    v_and_b32 v18, 31, v2             ; l&31
    v_bfe_u32 v19, v18, 1, 3          ; swz
    s_lshl_b32 s28, s27, 6
    v_add_u32 v18, s28, v18
    v_lshlrev_b32 v18, 7, v18
    """)
    for sp in range(4):
        e(f"""
        v_add_u32 v20, {2*sp}, v17
        v_xor_b32 v20, v20, v19
        v_lshl_add_u32 {vB[sp]}, v20, 4, v18
        """)
    e(f"""
    s_mul_i32 s30, s25, {8*3584}
    s_lshl_b32 s28, s24, 8
    s_add_u32 s30, s30, s28
    s_lshl_b32 s31, s23, 7
    s_lshl_b32 s28, s25, 5
    s_add_u32 s31, s31, s28
    s_mul_i32 s31, s31, 896
    s_lshl_b32 s32, s25, 11
    s_add_u32 s32, s32, {G1_WB}
    s_lshl_b32 s33, s25, 12
    """)
    if ROT:
        e(f"""
        s_mul_i32 s34, s21, {ROT}
        s_mul_i32 s28, s34, 9363
        s_lshr_b32 s28, s28, 16
        s_mul_i32 s28, s28, 7
        s_sub_u32 s34, s34, s28
        """)
    else:
        e("s_mov_b32 s34, 0")
    e(f"""
    s_waitcnt lgkmcnt(0)
    s_mov_b32 s12, s10
    s_mov_b32 s13, s11
    s_mov_b32 s6, {L*D*2}
    s_mov_b32 s7, 0x20000
    s_mov_b32 s10, {D*F*2}
    s_mov_b32 s11, 0x20000
    s_mov_b32 s14, {D*F*2}
    s_mov_b32 s15, 0x20000
    s_mov_b32 s18, {WS_H_SIZE}
    s_mov_b32 s19, 0x20000
    """)
    def dma_x(kb, stage):
        gs = []
        for n in range(4):
            g = []
            if n == 0:
                g.append(f"s_lshl_b32 s38, {kb}, 7")
                g.append(f"s_add_u32 s38, s38, s31")
                g.append(f"s_add_u32 m0, s33, {stage}")
            else:
                g.append(f"s_add_u32 s38, s38, {8*896}")
                g.append(f"s_add_u32 m0, m0, 1024")
            g.append("s_nop 0")
            g.append(f"buffer_load_dwordx4 {vX0 if n % 2 == 0 else vX1}, s[4:7], s38 offen lds")
            gs.append(g)
        return gs
    def dma_w(kb, par, stage):
        gs = []
        for n in range(4):
            mat, sub = n >> 1, n & 1
            g = []
            if n == 0:
                g.append(f"s_mul_i32 s39, {kb}, {64*3584}")
                g.append(f"s_add_u32 s39, s39, s30")
                if par: g.append(f"s_add_u32 s39, s39, {32*3584}")
                g.append(f"s_add_u32 s40, s39, {4*3584}")
                g.append(f"s_add_u32 m0, s32, {stage}")
            elif n == 1: g.append("s_add_u32 m0, m0, 1024")
            elif n == 2: g.append(f"s_add_u32 m0, m0, {8192-1024}")
            elif n == 3: g.append("s_add_u32 m0, m0, 1024")
            g.append("s_nop 0")
            g.append(f"buffer_load_dwordx4 {vW}, s[{8+4*mat}:{11+4*mat}], {'s39' if sub == 0 else 's40'} offen lds")
            gs.append(g)
        return gs
    S0, S1, ACC = 32, 56, 128
    def frag_reads(st, s, sp):
        r = []
        for tt in range(2):
            r.append(f"ds_read_b128 v[{st+16+4*tt}:{st+19+4*tt}], {vB[sp]} offset:{4096*tt}")
        for mat in range(2):
            for ee in range(2):
                b = st + 8*mat + 4*ee
                for hr in range(2):
                    r.append(f"ds_read_b64_tr_b16 v[{b+2*hr}:{b+2*hr+1}], {vA[ee]} offset:{mat*8192 + (16*s+4*hr)*256}")
        return r
    def mfmas(st):
        r = []
        for mat in range(2):
            for ee in range(2):
                for tt in range(2):
                    d = ACC + 64*mat + 32*ee + 16*tt
                    r.append(f"v_mfma_f32_32x32x16_bf16 v[{d}:{d+15}], v[{st+8*mat+4*ee}:{st+8*mat+4*ee+3}], v[{st+16+4*tt}:{st+19+4*tt}], v[{d}:{d+15}]")
        return r
    def interleave(mf, groups):
        n = len(mf)
        for i in range(n):
            if not opt.get('nomfma'): e(mf[i])
            if i < len(groups):
                for x in groups[i]: e(x)
        for g in groups[n:]:
            for x in g: e(x)
    def chunk(par, vm, first=False, dma=True):
        e(f"s_waitcnt vmcnt({vm}) lgkmcnt(0)")
        e("s_barrier")
        e(f"s_add_u32 s28, s41, {G1_WB}")
        e(f"v_add_u32 {vA[0]}, s28, {vAc[0]}")
        e(f"v_add_u32 {vA[1]}, s28, {vAc[1]}")
        rd = frag_reads(S0, 0, 2*par)
        if opt.get('noread'): rd = ['s_nop 0']*10
        dm = []; late = []
        if dma and not (opt.get('nodma') and not first):
            if par == 0: dm += dma_x('s35', 's37')
            dm += dma_w('s35', par, 's36')
        if first:
            for x in rd: e(x)
            for g in dm:
                for x in g: e(x)
        else:
            groups = [rd[0:3], rd[3:6], rd[6:8], rd[8:10]]
            nd = len(dm)
            late = []
            if opt.get('spread'):
                if nd == 8: groups += [dm[0], dm[1], dm[2], dm[3]]; late = [dm[4], dm[5], dm[6], dm[7]]
                elif nd == 4: groups += [dm[0], [], dm[1], []]; late = [dm[2], [], dm[3], []]
            else:
                if nd == 8: groups += [dm[0]+dm[1], dm[2]+dm[3], dm[4]+dm[5], dm[6]+dm[7]]
                elif nd == 4: groups += [dm[0], dm[1], dm[2], dm[3]]
            interleave(mfmas(S1), groups)
        e("s_waitcnt lgkmcnt(0)")
        rd = frag_reads(S1, 1, 2*par+1)
        if opt.get('noread'): rd = ['s_nop 0']*10
        interleave(mfmas(S0), [rd[0:3], rd[3:6], rd[6:8], rd[8:10]] + (late if not first else []))
        e(f"""
        s_mov_b32 s36, s41
        s_add_u32 s41, s41, 16384
        s_cmp_eq_u32 s41, 49152
        s_cselect_b32 s41, 0, s41
        """)
        if par == 1:
            for sp in range(4): e(f"v_xor_b32 {vB[sp]}, 16384, {vB[sp]}")
    e("s_mov_b32 s37, 0\ns_mov_b32 s36, 0")
    for g in dma_x('s34', 's37'):
        for x in g: e(x)
    for g in dma_w('s34', 0, 's36'):
        for x in g: e(x)
    e("s_mov_b32 s36, 16384")
    for g in dma_w('s34', 1, 's36'):
        for x in g: e(x)
    e(";STAMP 0")
    for r in range(128): e(f"v_mov_b32 v{ACC+r}, 0")
    e("s_mov_b32 s41, 0\ns_mov_b32 s36, 32768\ns_mov_b32 s37, 16384")
    def next_kb():
        e("s_add_u32 s35, s35, 1\ns_cmp_eq_u32 s35, 7\ns_cselect_b32 s35, 0, s35")
    e("s_mov_b32 s35, s34")
    next_kb()
    e("s_waitcnt vmcnt(4)")
    e(";STAMP 1")
    chunk(0, 4, first=True)
    chunk(1, 8)
    e(";STAMP 2")
    next_kb()
    e("s_xor_b32 s37, s37, 16384")
    e("s_mov_b32 s42, 5")
    a.label('L_g1_loop')
    chunk(0, 4)
    chunk(1, 8)
    next_kb()
    e("s_xor_b32 s37, s37, 16384")
    e("s_sub_u32 s42, s42, 1\ns_cmp_lg_u32 s42, 0\ns_cbranch_scc1 L_g1_loop")
    e(";STAMP 3")
    chunk(0, 4, dma=False)
    chunk(1, 0, dma=False)
    e("s_waitcnt lgkmcnt(0)")
    for m in mfmas(S1): e(m)
    e(";STAMP 4")
    e(f"""
    s_lshl_b32 s28, s23, 2
    s_lshl_b32 s29, s27, 1
    s_add_u32 s28, s28, s29
    s_mul_i32 s28, s28, 112
    s_lshl_b32 s29, s24, 3
    s_add_u32 s28, s28, s29
    s_lshl_b32 s29, s26, 2
    s_add_u32 s28, s28, s29
    s_lshl_b32 s28, s28, 10
    v_lshlrev_b32 v3, 4, v2
    """)
    for ee in range(2):
        for tt in range(2):
            g0 = ACC + 32*ee + 16*tt; u0 = g0 + 64
            for r in range(16):
                e(f"v_cvt_pk_bf16_f32 v{g0+r}, 0, v{g0+r}")
                e(f"v_cvt_pk_bf16_f32 v{u0+r}, 0, v{u0+r}")
            for r in range(0, 16, 2):
                e(f"v_pk_mul_f32 v[{g0+r}:{g0+r+1}], v[{g0+r}:{g0+r+1}], v[{u0+r}:{u0+r+1}]")
            o = 32 + 8*(2*ee+tt)
            for r in range(8):
                e(f"v_cvt_pk_bf16_f32 v{o+r}, v{g0+2*r}, v{g0+2*r+1}")
            off = (tt*112 + 2*ee)*1024
            e(f"s_add_u32 s29, s28, {off}")
            e(f"buffer_store_dwordx4 v[{o}:{o+3}], v3, s[16:19], s29 offen")
            e(f"buffer_store_dwordx4 v[{o+4}:{o+7}], v3, s[16:19], s29 offen offset:1024")
    e("s_endpgm")

def kgen(a, opt):
    e = a.e
    a.label('L_kgen')
    if opt.get('kgenprio'): e(f"s_setprio {opt['kgenprio']}")
    e(f"""
    s_sub_u32 s20, s2, 256
    s_load_dwordx4 s[4:7], s[0:1], {KA_ARE}
    s_load_dwordx4 s[8:11], s[0:1], {KA_BRE}
    s_load_dwordx4 s[12:15], s[0:1], {KA_CRE}
    s_load_dwordx2 s[16:17], s[0:1], {KA_LOGDT}
    s_load_dwordx2 s[18:19], s[0:1], {KA_WS}
    v_lshrrev_b32 v1, 6, v0
    v_and_b32 v2, 63, v0
    v_readfirstlane_b32 s21, v1
    s_lshl_b32 s22, s20, 2
    s_lshr_b32 s23, s21, 1            ; c
    s_and_b32 s24, s21, 1             ; nh
    s_lshl_b32 s25, s20, 1
    s_add_u32 s25, s25, s23           ; d
    s_lshl_b32 s26, s25, 9
    s_lshl_b32 s27, s24, 8
    s_add_u32 s26, s26, s27
    v_lshl_add_u32 v3, v2, 2, s26
    s_waitcnt lgkmcnt(0)
    s_load_dword s28, s[16:17], s22
    global_load_dword v4, v3, s[4:5]
    global_load_dword v5, v3, s[6:7]
    global_load_dword v6, v3, s[8:9]
    global_load_dword v7, v3, s[10:11]
    global_load_dword v8, v3, s[12:13]
    global_load_dword v9, v3, s[14:15]
    s_mul_i32 s30, s21, {KG_WAVE}
    v_and_b32 v10, 31, v2
    v_mul_u32_u24 v10, 272, v10
    v_lshrrev_b32 v11, 5, v2
    v_lshl_add_u32 v10, v11, 4, v10
    v_add_u32 v10, s30, v10
    """)
    ACC = 16
    for r in range(16): e(f"v_mov_b32 v{ACC+r}, 0")
    e(f"""
    s_waitcnt lgkmcnt(0)
    s_lshl_b32 s29, s28, 16
    s_and_b32 s28, s28, 0xffff0000
    s_cmp_eq_u32 s23, 0
    s_cselect_b32 s28, s29, s28
    v_mov_b32 v12, s28
    v_mul_f32 v12, 0x3fb8aa3b, v12
    v_exp_f32 v12, v12
    s_nop 0
    v_cvt_pk_bf16_f32 v12, 0, v12
    s_mov_b32 s31, 2
    s_waitcnt vmcnt(0)
    """)
    e(";STAMP 0")
    a.label('L_kg_round')
    Bp, Cp, K, E1, E8, E256, T, X = 32, 34, 36, 38, 40, 42, 44, 46
    H0, H2, H4, H6 = 48, 50, 52, 54
    Y, T2 = 56, 58
    def cmul(D, X_, W, tmp):
        e(f"v_pk_mul_f32 v[{tmp}:{tmp+1}], v[{X_}:{X_+1}], v[{W}:{W+1}] op_sel:[0,0] op_sel_hi:[1,0]")
        e(f"v_pk_fma_f32 v[{D}:{D+1}], v[{X_}:{X_+1}], v[{W}:{W+1}], v[{tmp}:{tmp+1}] op_sel:[1,1,0] op_sel_hi:[0,1,1] neg_lo:[0,1,0]")
    e(f"""
    v_lshlrev_b32 v60, 16, v4
    v_lshlrev_b32 v61, 16, v5
    v_lshlrev_b32 v{Bp}, 16, v6
    v_lshlrev_b32 v{Bp+1}, 16, v7
    v_lshlrev_b32 v{Cp}, 16, v8
    v_lshlrev_b32 v{Cp+1}, 16, v9
    v_mul_f32 v60, v12, v60
    v_mul_f32 v61, v12, v61
    v_mul_f32 v{Bp}, v12, v{Bp}
    v_mul_f32 v{Bp+1}, v12, v{Bp+1}
    v_mul_f32 v60, 0x3fb8aa3b, v60
    v_mul_f32 v61, 0.15915494, v61
    """)
    cmul(K, Cp, Bp, T)
    for (E, m) in ((E1, 1.0), (E8, 8.0), (E256, 256.0)):
        lit = {1.0: None, 8.0: '0x41000000', 256.0: '0x43800000'}[m]
        if lit:
            e(f"v_mul_f32 v62, {lit}, v60\nv_mul_f32 v63, {lit}, v61\nv_fract_f32 v63, v63\nv_exp_f32 v62, v62")
        else:
            e(f"v_fract_f32 v63, v61\nv_exp_f32 v62, v60")
        e(f"v_cos_f32 v{E}, v63\nv_sin_f32 v{E+1}, v63")
        e(f"v_mul_f32 v{E}, v62, v{E}\nv_mul_f32 v{E+1}, v62, v{E+1}")
    for r in range(4, 10): e(f"v_lshrrev_b32 v{r}, 16, v{r}")
    e("s_mov_b32 m0, s30")
    cnt = [0]
    TMPS = [64, 65, 66, 67]
    def wrA(row, R):
        t = TMPS[cnt[0] % 4]; cnt[0] += 1
        e(f"v_cvt_pk_bf16_f32 v{t}, v{R}, -v{R+1}")
        e(f"ds_write_addtid_b32 v{t} offset:{row*272}")
    def wrB(row, R):
        t = TMPS[cnt[0] % 4]; cnt[0] += 1
        e(f"v_cvt_pk_bf16_f32 v{t}, v{R}, v{R+1}")
        e(f"ds_write_addtid_b32 v{t} offset:{KG_B + row*272}")
    wrA(0, K)
    cmul(X, K, E1, T); wrA(1, X)
    cmul(H2, X, E1, T); wrA(2, H2)
    cmul(X, H2, E1, T); wrA(3, X)
    cmul(H4, X, E1, T); wrA(4, H4)
    cmul(X, H4, E1, T); wrA(5, X)
    cmul(H6, X, E1, T); wrA(6, H6)
    cmul(X, H6, E1, T); wrA(7, X)
    cmul(K, K, E256, T); wrA(8, K)
    cmul(H2, H2, E256, T2); wrA(9, H2)
    cmul(H4, H4, E256, T); wrA(10, H4)
    cmul(H6, H6, E256, T2); wrA(11, H6)
    cmul(K, K, E256, T); wrA(12, K)
    cmul(H4, H4, E256, T2); wrA(13, H4)
    cmul(K, K, E256, T); wrA(14, K)
    cmul(H4, H4, E256, T2); wrA(15, H4)
    for row in range(16, 21):
        cmul(K, K, E256, T); wrA(row, K)
    E16 = E1
    cmul(E16, E8, E8, T)
    e(f"v_mov_b32 v{X}, 1.0\nv_mov_b32 v{X+1}, 0")
    e(f"v_mov_b32 v{Y}, v{E8}\nv_mov_b32 v{Y+1}, v{E8+1}")
    wrB(0, X); wrB(1, Y)
    for b in range(2, 32, 2):
        cmul(X, X, E16, T); cmul(Y, Y, E16, T2)
        wrB(b, X); wrB(b+1, Y)
    e(";STAMP 1")
    FA, FB = 72, 104
    for s in range(8):
        e(f"ds_read_b128 v[{FA+4*s}:{FA+4*s+3}], v10 offset:{32*s}")
        e(f"ds_read_b128 v[{FB+4*s}:{FB+4*s+3}], v10 offset:{KG_B + 32*s}")
    for s in range(8):
        e(f"s_waitcnt lgkmcnt({min(15, 14-2*s)})")
        e(f"v_mfma_f32_32x32x16_bf16 v[{ACC}:{ACC+15}], v[{FA+4*s}:{FA+4*s+3}], v[{FB+4*s}:{FB+4*s+3}], v[{ACC}:{ACC+15}]")
    e("s_sub_u32 s31, s31, 1\ns_cmp_lg_u32 s31, 0\ns_cbranch_scc1 L_kg_round")
    e(";STAMP 2")
    e(f"""
    v_lshlrev_b32 v11, 4, v2
    s_cmp_eq_u32 s24, 0
    s_cbranch_scc1 L_kg_skipw
    v_add_u32 v13, s30, v11
    s_nop 15
    """)
    for i in range(4):
        e(f"ds_write_b128 v13, v[{ACC+4*i}:{ACC+4*i+3}] offset:{1024*i}")
    e("s_waitcnt lgkmcnt(0)")
    a.label('L_kg_skipw')
    e("s_barrier")
    e(f"""
    s_cmp_eq_u32 s24, 0
    s_cbranch_scc0 L_kg_done
    s_add_u32 s30, s30, {KG_WAVE}
    v_add_u32 v13, s30, v11
    """)
    for i in range(3):
        e(f"ds_read_b128 v[{72+4*i}:{75+4*i}], v13 offset:{1024*i}")
    e(f"""
    s_add_u32 s18, s18, {WS_K2}
    s_addc_u32 s19, s19, 0
    s_lshl_b32 s26, s25, 11
    v_and_b32 v14, 31, v2
    v_lshlrev_b32 v14, 6, v14
    v_lshrrev_b32 v15, 5, v2
    v_lshl_add_u32 v14, v15, 3, v14
    v_add_u32 v14, s26, v14
    s_waitcnt lgkmcnt(0)
    """)
    for r in range(12):
        e(f"v_add_f32 v{72+r}, v{ACC+r}, v{72+r}")
    for q in range(3):
        e(f"v_cvt_pk_bf16_f32 v{90+2*q}, v{72+4*q}, v{72+4*q+1}")
        e(f"v_cvt_pk_bf16_f32 v{91+2*q}, v{72+4*q+2}, v{72+4*q+3}")
        e(f"global_store_dwordx2 v14, v[{90+2*q}:{91+2*q}], s[18:19] offset:{16*q}")
    a.label('L_kg_done')
    e("s_endpgm")

def load_rows_dma(e, srd, soff_reg, stride_lds_fn, wave_reg, nrows_per_wave):
    pass

def p1(a, opt):
    e = a.e
    a.label('L_p1')
    e(f"""
    s_sub_u32 s20, s2, 224
    s_load_dwordx2 s[4:5], s[0:1], {KA_U}
    s_load_dwordx2 s[8:9], s[0:1], {KA_GW}
    s_load_dwordx2 s[12:13], s[0:1], {KA_WS}
    v_lshrrev_b32 v1, 6, v0
    v_and_b32 v2, 63, v0
    v_readfirstlane_b32 s21, v1
    v_lshlrev_b32 v3, 4, v2           ; lane*16
    s_mul_i32 s22, s20, {64*896}
    s_mul_i32 s23, s21, {16*896}
    s_add_u32 s22, s22, s23
    s_mul_i32 s24, s21, {16*896+32}
    s_waitcnt lgkmcnt(0)
    s_mov_b32 s6, {L*D*2}
    s_mov_b32 s7, 0x20000
    s_mov_b32 s10, {D*2}
    s_mov_b32 s11, 0x20000
    s_mov_b32 exec_lo, -1
    s_mov_b32 exec_hi, 0x00ffffff
    """)
    for r in range(16):
        e(f"s_add_u32 m0, s24, {r*896 + (r>>3)*16}")
        e(f"s_add_u32 s25, s22, {r*896}")
        e(f"buffer_load_dwordx4 v3, s[4:7], s25 offen lds")
    e("s_mov_b64 exec, -1")
    e(f"""
    v_and_b32 v4, 3, v0
    v_lshlrev_b32 v4, 4, v4
    """)
    GW = 64
    for m in range(14):
        e(f"buffer_load_dwordx4 v[{GW+4*m}:{GW+4*m+3}], v4, s[8:11], 0 offen offset:{64*m}")
    e(f"""
    v_lshrrev_b32 v5, 2, v0           ; token
    v_lshrrev_b32 v6, 3, v5
    v_mul_u32_u24 v7, 896, v5
    v_lshl_add_u32 v7, v6, 4, v7
    v_add_u32 v7, v7, v4
    v_mov_b32 v8, 0
    v_mov_b32 v9, 0x3f803f80
    s_waitcnt vmcnt(0)
    s_barrier
    """)
    e(";STAMP 0")
    for m in range(14):
        e(f"ds_read_b128 v[{128+4*m}:{128+4*m+3}], v7 offset:{64*m}")
    for m in range(14):
        e(f"s_waitcnt lgkmcnt({min(15,13-m)})")
        for k in range(4):
            x = 128+4*m+k; g = GW+4*m+k
            e(f"""
            v_lshlrev_b32 v10, 16, v{x}
            v_and_b32 v11, 0xffff0000, v{x}
            v_lshlrev_b32 v12, 16, v{g}
            v_and_b32 v13, 0xffff0000, v{g}
            v_pk_mul_f32 v[10:11], v[10:11], v[12:13]
            v_cvt_pk_bf16_f32 v10, v10, v11
            v_dot2c_f32_bf16 v8, v10, v9
            """)
    e(f"""
    s_nop 3
    v_add_f32_dpp v8, v8, v8 quad_perm:[1,0,3,2] row_mask:0xf bank_mask:0xf
    s_nop 1
    v_add_f32_dpp v8, v8, v8 quad_perm:[2,3,0,1] row_mask:0xf bank_mask:0xf
    v_cvt_pk_bf16_f32 v8, 0, v8
    v_mul_f32 v8, 0xbfb8aa3b, v8
    v_exp_f32 v8, v8
    v_add_f32 v8, 1.0, v8
    v_rcp_f32 v8, v8
    v_cvt_pk_bf16_f32 v8, 0, v8
    s_add_u32 s14, s12, {WS_G}
    s_addc_u32 s15, s13, 0
    s_lshl_b32 s26, s20, 8
    v_lshl_add_u32 v10, v5, 2, s26
    v_and_b32 v11, 3, v0
    v_cmp_eq_u32 vcc, 0, v11
    s_and_saveexec_b64 s[28:29], vcc
    global_store_dword v10, v8, s[14:15]
    s_mov_b64 exec, s[28:29]
    """)
    e(";STAMP 1")
    e(f"""
    v_and_b32 v4, 7, v2
    v_lshrrev_b32 v5, 3, v2
    v_mul_u32_u24 v6, {8*896+16}, v4
    s_mul_i32 s26, s21, 56
    v_add_u32 v5, s26, v5
    v_lshl_add_u32 v6, v5, 2, v6
    v_lshlrev_b32 v7, 13, v5          ; 2cp*4096
    v_lshl_add_u32 v7, v4, 4, v7      ; + o*16
    s_lshl_b32 s26, s20, 7
    v_add_u32 v7, s26, v7             ; + p*128
    s_add_u32 s12, s12, {WS_UT}
    s_addc_u32 s13, s13, 0
    s_mov_b32 s30, 0x05040100
    s_mov_b32 s31, 0x07060302
    s_mov_b32 s32, 7
    """)
    a.label('L_p1_tr')
    for r in range(8):
        e(f"ds_read_b32 v{16+r}, v6 offset:{r*896}")
    e("s_waitcnt lgkmcnt(0)")
    for k in range(4):
        e(f"v_perm_b32 v{24+k}, v{17+2*k}, v{16+2*k}, s30")
        e(f"v_perm_b32 v{28+k}, v{17+2*k}, v{16+2*k}, s31")
    e(f"""
    global_store_dwordx4 v7, v[24:27], s[12:13]
    v_add_u32 v12, 4096, v7
    global_store_dwordx4 v12, v[28:31], s[12:13]
    v_add_u32 v6, 32, v6
    v_add_u32 v7, {16*4096}, v7
    s_sub_u32 s32, s32, 1
    s_cmp_lg_u32 s32, 0
    s_cbranch_scc1 L_p1_tr
    s_endpgm
    """)

def p2(a, opt):
    e = a.e
    a.label('L_p2')
    e(f"""
    s_sub_u32 s20, s2, 480
    s_load_dwordx2 s[4:5], s[0:1], {KA_WD}
    s_load_dwordx2 s[12:13], s[0:1], {KA_WS}
    v_lshrrev_b32 v1, 6, v0
    v_and_b32 v2, 63, v0
    v_readfirstlane_b32 s21, v1
    v_lshlrev_b32 v3, 4, v2
    s_mul_i32 s22, s20, {64*896}
    s_mul_i32 s23, s21, {16*896}
    s_add_u32 s22, s22, s23
    s_mul_i32 s24, s21, {16*960}
    s_waitcnt lgkmcnt(0)
    s_mov_b32 s6, {F*D*2}
    s_mov_b32 s7, 0x20000
    s_mov_b32 exec_lo, -1
    s_mov_b32 exec_hi, 0x00ffffff
    """)
    for r in range(16):
        e(f"s_add_u32 m0, s24, {r*960}")
        e(f"s_add_u32 s25, s22, {r*896}")
        e(f"buffer_load_dwordx4 v3, s[4:7], s25 offen lds")
    e("s_mov_b64 exec, -1")
    e(f"""
    v_lshrrev_b32 v4, 5, v2           ; hh
    v_bfe_u32 v5, v2, 2, 2            ; jj
    v_lshl_add_u32 v4, v4, 2, v5
    s_lshl_b32 s26, s21, 4
    v_add_u32 v4, s26, v4
    v_mul_u32_u24 v4, 960, v4
    v_bfe_u32 v5, v2, 4, 1            ; cb
    v_lshl_add_u32 v4, v5, 5, v4
    v_and_b32 v5, 3, v2
    v_lshl_add_u32 v4, v5, 3, v4
    s_add_u32 s12, s12, {WS_WD}
    s_addc_u32 s13, s13, 0
    s_lshl_b32 s26, s20, 2
    s_add_u32 s26, s26, s21           ; ks
    s_lshl_b32 s26, s26, 10
    v_add_u32 v6, s26, v3
    s_waitcnt vmcnt(0)
    s_barrier
    """)
    e(";STAMP 0")
    for nt in range(14):
        b = 16 + 4*nt
        e(f"ds_read_b64_tr_b16 v[{b}:{b+1}], v4 offset:{nt*64}")
        e(f"ds_read_b64_tr_b16 v[{b+2}:{b+3}], v4 offset:{nt*64 + 8*960}")
    for nt in range(14):
        b = 16 + 4*nt
        e(f"s_waitcnt lgkmcnt({min(15, 26-2*nt)})")
        e(f"global_store_dwordx4 v6, v[{b}:{b+3}], s[12:13]")
        if nt < 13: e(f"v_add_u32 v6, {112*1024}, v6")
    e("s_endpgm")

def kernel_a(opt):
    a = Asm(); e = a.e
    e(".globl ka_kernel\n.p2align 8\n.type ka_kernel,@function")
    a.label('ka_kernel')
    m = opt.get('maska', 15)
    e(f"""
    s_cmp_lt_u32 s2, 224
    s_cbranch_scc1 {'L_gemm1' if m & 1 else 'L_exit_a'}
    s_cmp_lt_u32 s2, 256
    s_cbranch_scc1 {'L_p1' if m & 2 else 'L_exit_a'}
    s_cmp_lt_u32 s2, 480
    s_cbranch_scc1 {'L_kgen' if m & 4 else 'L_exit_a'}
    s_cmp_lt_u32 s2, 508
    s_cbranch_scc1 {'L_p2' if m & 8 else 'L_exit_a'}
    """)
    a.label('L_exit_a')
    e("s_endpgm")
    gemm1(a, opt); kgen(a, opt); p1(a, opt); p2(a, opt)
    return a
```

```python
from asmlib import Asm
from common import *

CV_UC = [0, 16640]; CV_KR = [33280, 37888]; CV_TB = [42496, 44544]; CV_EX = 46592
G2_RED = 0
G2_OUT = 49152

def gemm2(a, opt):
    e = a.e
    DEPTH = opt.get('g2depth', 10)
    ROT = opt.get('rot2', 0)
    a.label('L_gemm2')
    e(f"""
    s_load_dwordx2 s[4:5], s[0:1], {KA_WS}
    s_load_dwordx2 s[16:17], s[0:1], {KA_OUT}
    s_load_dwordx2 s[18:19], s[0:1], {KA_DBG}
    s_and_b32 s20, s2, 7
    s_lshr_b32 s21, s2, 3
    s_and_b32 s22, s21, 3
    s_lshl_b32 s20, s20, 2
    s_add_u32 s22, s22, s20
    s_lshr_b32 s23, s21, 2
    v_lshrrev_b32 v1, 6, v0
    v_and_b32 v2, 63, v0
    v_readfirstlane_b32 s24, v1       ; wave
    v_lshlrev_b32 v3, 4, v2           ; lane*16
    s_mul_i32 s25, s22, {2*112*1024}
    s_mul_i32 s26, s24, {28*1024}
    s_add_u32 s25, s25, s26
    s_add_u32 s27, s25, {112*1024}    ; h tile1
    s_mul_i32 s28, s23, {2*112*1024}
    s_add_u32 s28, s28, s26
    s_add_u32 s29, s28, {112*1024}
    s_waitcnt lgkmcnt(0)
    s_add_u32 s8, s4, {WS_WD}
    s_addc_u32 s9, s5, 0
    s_mov_b32 s10, {WS_WD_SIZE}
    s_mov_b32 s11, 0x20000
    s_mov_b32 s12, s4
    s_mov_b32 s13, s5
    s_mov_b32 s14, {WS_H_SIZE}
    s_mov_b32 s15, 0x20000
    """)
    if ROT:
        e(f"""
        s_mul_i32 s30, s23, {ROT}
        s_add_u32 s30, s30, s21
        s_mul_i32 s31, s30, 9363
        s_lshr_b32 s31, s31, 16
        s_mul_i32 s31, s31, 7
        s_sub_u32 s30, s30, s31
        """)
    else:
        e("s_mov_b32 s30, 0")
    ACC = 0 + 16
    RING = 80
    def ring(n): return RING + 16*(n % DEPTH)
    def loads(n):
        out = []
        if n % 4 == 0:
            out.append(f"s_lshl_b32 s31, s30, 12")
            out.append(f"s_add_u32 s32, s25, s31")
            out.append(f"s_add_u32 s33, s27, s31")
            out.append(f"s_add_u32 s34, s28, s31")
            out.append(f"s_add_u32 s35, s29, s31")
            out.append(f"s_add_u32 s30, s30, 1")
            out.append(f"s_cmp_eq_u32 s30, 7")
            out.append(f"s_cselect_b32 s30, 0, s30")
        r = ring(n); o = (n % 4)*1024
        out.append(f"buffer_load_dwordx4 v[{r}:{r+3}], v3, s[12:15], s32 offen offset:{o}")
        out.append(f"buffer_load_dwordx4 v[{r+8}:{r+11}], v3, s[8:11], s34 offen offset:{o}")
        out.append(f"buffer_load_dwordx4 v[{r+4}:{r+7}], v3, s[12:15], s33 offen offset:{o}")
        out.append(f"buffer_load_dwordx4 v[{r+12}:{r+15}], v3, s[8:11], s35 offen offset:{o}")
        return out
    for n in range(DEPTH):
        for x in loads(n): e(x)
    e(";STAMP 0")
    for r in range(64): e(f"v_mov_b32 v{ACC+r}, 0")
    for n in range(28):
        rem = min(DEPTH, 28 - n)
        e(f"s_waitcnt vmcnt({4*(rem-1)})")
        if n in (0, 7, 14, 21): e(f";STAMP {1 + n//7}")
        r = ring(n)
        for tt in range(2):
            for nt in range(2):
                d = ACC + 32*tt + 16*nt
                e(f"v_mfma_f32_32x32x16_bf16 v[{d}:{d+15}], v[{r+4*tt}:{r+4*tt+3}], v[{r+8+4*nt}:{r+8+4*nt+3}], v[{d}:{d+15}]")
        if n + DEPTH < 28:
            for x in loads(n + DEPTH): e(x)
    e(";STAMP 5")
    e(f"""
    s_lshr_b32 s36, s24, 1            ; tt
    s_and_b32 s37, s24, 1             ; nt
    """)
    e(f"""
    s_add_u32 s38, s4, {WS_G}
    s_addc_u32 s39, s5, 0
    s_lshl_b32 s40, s22, 6
    s_lshl_b32 s41, s36, 5
    s_add_u32 s40, s40, s41
    v_lshrrev_b32 v4, 5, v2           ; hh
    v_lshlrev_b32 v5, 4, v4
    s_lshl_b32 s41, s40, 2
    v_add_u32 v5, s41, v5
    """)
    GV = 96
    for q in range(4):
        e(f"global_load_dwordx4 v[{GV+4*q}:{GV+4*q+3}], v5, s[38:39] offset:{32*q}")
    for t in range(4):
        e(f"s_cmp_eq_u32 s24, {t}\ns_cbranch_scc1 L_g2_skip{t}")
        e(f"s_sub_u32 s31, s24, {t+1}\ns_and_b32 s31, s31, 3\ns_lshl_b32 s31, s31, 12\ns_add_u32 s31, s31, {G2_RED + t*12288}")
        e(f"v_add_u32 v6, s31, v3")
        for i in range(4):
            e(f"ds_write_b128 v6, v[{ACC+16*t+4*i}:{ACC+16*t+4*i+3}] offset:{1024*i}")
        a.label(f'L_g2_skip{t}')
    e("s_waitcnt lgkmcnt(0)\ns_barrier")
    e(f"s_mul_i32 s31, s24, 12288\nv_add_u32 v6, s31, v3")
    RD = 112
    for sl in range(3):
        for i in range(4):
            e(f"ds_read_b128 v[{RD+16*sl+4*i}:{RD+16*sl+4*i+3}], v6 offset:{G2_RED + sl*4096 + 1024*i}")
    OWN = 160
    for t in range(4):
        e(f"s_cmp_eq_u32 s24, {t}\ns_cbranch_scc0 L_g2_own{t}")
        for r in range(16): e(f"v_mov_b32 v{OWN+r}, v{ACC+16*t+r}")
        a.label(f'L_g2_own{t}')
    e("s_waitcnt lgkmcnt(0)")
    for r in range(16):
        e(f"v_add_f32 v{OWN+r}, v{OWN+r}, v{RD+r}")
        e(f"v_add_f32 v{RD+16+r}, v{RD+16+r}, v{RD+32+r}")
    for r in range(16):
        e(f"v_add_f32 v{OWN+r}, v{OWN+r}, v{RD+16+r}")
    e(";STAMP 6")
    e(f"""
    s_lshl_b32 s31, s23, 5
    v_mov_b32 v7, s31
    s_mov_b32 s42, 0x100000
    """)
    a.label('L_g2_poll')
    e(f"""
    global_load_dword v8, v7, s[18:19] sc1
    s_waitcnt vmcnt(0)
    v_readfirstlane_b32 s43, v8
    s_cmp_ge_u32 s43, {32 if opt.get('maskb', 3) & 2 else 0}
    s_cbranch_scc1 L_g2_ready
    s_sleep 2
    s_sub_u32 s42, s42, 1
    s_cmp_lg_u32 s42, 0
    s_cbranch_scc1 L_g2_poll
    """)
    a.label('L_g2_ready')
    e(";STAMP 7")
    e(f"""
    s_add_u32 s44, s4, {WS_AT}
    s_addc_u32 s45, s5, 0
    s_lshl_b32 s31, s23, 6
    s_lshl_b32 s41, s37, 5
    s_add_u32 s31, s31, s41
    v_and_b32 v8, 31, v2
    v_add_u32 v8, s31, v8
    v_lshlrev_b32 v8, 12, v8
    v_lshl_add_u32 v8, v4, 3, v8
    s_lshl_b32 s41, s40, 1
    v_add_u32 v8, s41, v8
    """)
    AV = 176
    for q in range(4):
        e(f"global_load_dwordx2 v[{AV+2*q}:{AV+2*q+1}], v8, s[44:45] offset:{16*q} sc1")
    e(f"""
    v_and_b32 v9, 31, v2
    s_lshl_b32 s41, s37, 5
    v_add_u32 v9, s41, v9
    v_lshlrev_b32 v9, 1, v9
    s_lshl_b32 s41, s36, 5
    v_lshl_add_u32 v10, v4, 2, s41
    v_mul_u32_u24 v10, 144, v10
    v_add_u32 v9, v9, v10
    s_waitcnt vmcnt(0)
    """)
    for q in range(4):
        for i in range(4):
            r = 4*q + i
            av = AV + 2*q + (i >> 1)
            g = GV + 4*q + i
            if i & 1: e(f"v_and_b32 v11, 0xffff0000, v{av}")
            else: e(f"v_lshlrev_b32 v11, 16, v{av}")
            e(f"""
            v_cvt_pk_bf16_f32 v12, 0, v{OWN+r}
            v_sub_f32 v13, 1.0, v{g}
            v_mul_f32 v11, v{g}, v11
            v_cvt_pk_bf16_f32 v13, 0, v13
            v_cvt_pk_bf16_f32 v11, 0, v11
            v_mul_f32 v12, v13, v12
            v_cvt_pk_bf16_f32 v12, 0, v12
            v_add_f32 v11, v11, v12
            v_cvt_pk_bf16_f32 v11, v11, v11
            ds_write_b16 v9, v11 offset:{G2_OUT + (8*q+i)*144}
            """)
    e("s_waitcnt lgkmcnt(0)\ns_barrier")
    e(f"""
    v_lshrrev_b32 v4, 3, v0
    v_and_b32 v5, 7, v0
    v_mul_u32_u24 v6, 144, v4
    v_lshl_add_u32 v6, v5, 4, v6
    ds_read_b128 v[12:15], v6 offset:{G2_OUT}
    ds_read_b128 v[16:19], v6 offset:{G2_OUT + 32*144}
    s_lshl_b32 s31, s22, 6
    v_add_u32 v4, s31, v4
    v_mul_u32_u24 v4, 896, v4
    v_lshl_add_u32 v4, v5, 4, v4
    s_lshl_b32 s31, s23, 7
    v_add_u32 v4, s31, v4
    v_add_u32 v5, {32*896}, v4
    s_waitcnt lgkmcnt(1)
    global_store_dwordx4 v4, v[12:15], s[16:17]
    s_waitcnt lgkmcnt(0)
    global_store_dwordx4 v5, v[16:19], s[16:17]
    s_endpgm
    """)

def conv(a, opt):
    e = a.e
    a.label('L_conv')
    if opt.get('convprio'): e(f"s_setprio {opt['convprio']}")
    e(f"""
    s_sub_u32 s20, s2, 224            ; kq
    s_load_dwordx2 s[4:5], s[0:1], {KA_WS}
    s_load_dwordx2 s[16:17], s[0:1], {KA_DSKIP}
    s_load_dwordx2 s[18:19], s[0:1], {KA_DBG}
    v_lshrrev_b32 v1, 6, v0
    v_and_b32 v2, 63, v0
    v_readfirstlane_b32 s21, v1       ; wave
    s_lshr_b32 s22, s21, 1            ; c
    s_and_b32 s23, s21, 1             ; kh
    s_lshl_b32 s24, s20, 1
    s_add_u32 s24, s24, s22           ; d
    s_lshl_b32 s25, s20, 2
    v_and_b32 v3, 127, v0
    s_waitcnt lgkmcnt(0)
    s_load_dword s26, s[16:17], s25
    s_add_u32 s6, s4, {WS_UT}
    s_addc_u32 s7, s5, 0
    s_add_u32 s8, s4, {WS_K2}
    s_addc_u32 s9, s5, 0
    s_add_u32 s10, s4, {WS_AT}
    s_addc_u32 s11, s5, 0
    s_lshl_b32 s27, s24, 12           ; d*4096
    v_lshlrev_b32 v4, 5, v3           ; 32 t
    v_add_u32 v5, s27, v4
    v_subrev_u32 v6, 8, v4
    v_max_i32 v6, 0, v6
    v_add_u32 v6, s27, v6
    global_load_dwordx2 v[16:17], v6, s[6:7]
    global_load_dwordx4 v[18:21], v5, s[6:7]
    global_load_dwordx4 v[22:25], v5, s[6:7] offset:16
    s_lshl_b32 s28, s20, 12
    v_lshl_add_u32 v7, v0, 4, s28
    global_load_dwordx4 v[28:31], v7, s[8:9]
    """)
    IDX = 40
    e("v_lshlrev_b32 v8, 3, v0\nv_sub_u32 v8, 2047, v8")
    for i in range(8):
        e(f"""
        v_subrev_u32 v9, {i}, v8
        v_cvt_f32_u32 v9, v9
        v_cvt_pk_bf16_f32 v9, 0, v9
        v_cvt_u32_f32 v9, v9
        v_lshrrev_b32 v10, 8, v9
        v_lshlrev_b32 v11, 3, v10
        v_lshl_add_u32 v12, v10, 2, 4
        v_lshl_add_u32 v13, v10, 1, 8
        v_min_u32 v11, v11, v12
        v_add_u32 v12, 12, v10
        v_min3_u32 v11, v11, v12, v13
        v_min_u32 v10, 2, v10
        v_and_b32 v12, 7, v9
        v_lshrrev_b32 v12, v10, v12
        v_add_u32 v11, v11, v12
        v_bfe_u32 v12, v9, 3, 5
        v_lshlrev_b32 v12, 6, v12
        v_lshl_add_u32 v{IDX+i}, v11, 1, v12
        """)
    e(f"""
    v_mov_b32 v32, 0
    v_mov_b32 v33, 0
    v_mov_b32 v34, 0
    v_mov_b32 v35, 0
    v_and_b32 v9, 31, v0
    v_lshlrev_b32 v9, 4, v9
    v_bfe_u32 v10, v0, 5, 1
    v_mul_u32_u24 v10, {CV_KR[1]-CV_KR[0]}, v10
    v_add_u32 v9, v9, v10
    v_cmp_gt_u32 vcc, 64, v0
    s_and_saveexec_b64 s[30:31], vcc
    s_cbranch_execz L_cv_z1
    ds_write_b128 v9, v[32:35] offset:{CV_KR[0] + 4096}
    """)
    a.label('L_cv_z1')
    e(f"""
    s_mov_b64 exec, s[30:31]
    v_lshrrev_b32 v9, 1, v0
    v_mul_u32_u24 v9, 4160, v9
    v_and_b32 v10, 1, v0
    v_lshl_add_u32 v9, v10, 4, v9
    v_cmp_gt_u32 vcc, 16, v0
    s_and_saveexec_b64 s[30:31], vcc
    s_cbranch_execz L_cv_z2
    ds_write_b128 v9, v[32:35]
    """)
    a.label('L_cv_z2')
    e("s_mov_b64 exec, s[30:31]")
    e(";STAMP 0")
    e(f"""
    v_lshlrev_b32 v9, 4, v0
    s_waitcnt vmcnt(0)
    ds_write_b128 v9, v[28:31] offset:{CV_TB[0]}
    v_cmp_eq_u32 vcc, 0, v3
    v_cndmask_b32 v16, v16, 0, vcc
    v_cndmask_b32 v17, v17, 0, vcc
    """.replace("v_cndmask_b32 v16, v16, 0, vcc", "v_cndmask_b32 v16, v16, v32, vcc").replace("v_cndmask_b32 v17, v17, 0, vcc", "v_cndmask_b32 v17, v17, v32, vcc"))
    for i in range(9):
        e(f"v_alignbit_b32 v{48+i}, v{17+i}, v{16+i}, 16")
    e(f"""
    s_mul_i32 s29, s22, {CV_UC[1]}
    v_lshl_add_u32 v10, v3, 5, s29
    ds_write_b128 v10, v[48:51] offset:{32}
    ds_write_b128 v10, v[52:55] offset:{32+16}
    ds_write_b128 v10, v[18:21] offset:{3*4160+32}
    ds_write_b128 v10, v[22:25] offset:{3*4160+32+16}
    v_add_u32 v11, {4160+32}, v10
    v_add_u32 v12, {2*4160+32}, v10
    """)
    for k in range(4):
        e(f"ds_write2_b32 v11, v{17+2*k}, v{18+2*k} offset0:{2*k} offset1:{2*k+1}")
        e(f"ds_write2_b32 v12, v{49+2*k}, v{50+2*k} offset0:{2*k} offset1:{2*k+1}")
    e("s_waitcnt lgkmcnt(0)\ns_barrier")
    e(";STAMP 1")
    for c in range(2):
        for i in range(8):
            e(f"ds_read_u16 v{64+8*c+i}, v{IDX+i} offset:{CV_TB[c]}")
    e("v_lshlrev_b32 v9, 4, v0")
    for c in range(2):
        e(f"s_waitcnt lgkmcnt({8 if c == 0 else 0})")
        for k in range(4):
            e(f"v_lshl_or_b32 v{60+k}, v{64+8*c+2*k+1}, 16, v{64+8*c+2*k}")
        e(f"ds_write_b128 v9, v[60:63] offset:{CV_KR[c]}")
    e(f"""
    v_and_b32 v10, 15, v2             ; b / a0
    v_lshrrev_b32 v11, 4, v2          ; q
    v_and_b32 v12, 3, v10
    v_mul_u32_u24 v12, 4160, v12
    v_lshrrev_b32 v13, 2, v10
    v_lshl_add_u32 v12, v13, 3, v12
    v_lshl_add_u32 v12, v11, 4, v12
    s_lshl_b32 s30, s23, 8
    s_add_u32 s31, s29, s30
    s_add_u32 s31, s31, 8
    v_add_u32 v12, s31, v12           ; vY
    s_mul_i32 s31, s22, {CV_KR[1]-CV_KR[0]}
    s_add_u32 s31, s31, {CV_KR[0] + 4064 - 3584}
    s_add_u32 s31, s31, s30
    v_lshlrev_b32 v13, 5, v10
    v_sub_u32 v13, s31, v13
    v_lshl_add_u32 v13, v11, 4, v13   ; vX
    s_waitcnt lgkmcnt(0)
    s_barrier
    """)
    e(";STAMP 2")
    ACC = 16; FY = [64, 128]; FX = [96, 160]
    for r in range(32): e(f"v_mov_b32 v{ACC+r}, 0")
    def reads(bufi, it):
        out = []
        for i in range(8):
            y = FY[bufi] + 4*i
            out.append(f"ds_read_b64 v[{y}:{y+1}], v12 offset:{512*i + 64*it}")
            out.append(f"ds_read_b64 v[{y+2}:{y+3}], v12 offset:{512*i + 64*it + 8}")
            x = FX[bufi] + 4*i
            out.append(f"ds_read_b128 v[{x}:{x+3}], v13 offset:{3584 - 512*i + 64*it}")
        return out
    for x in reads(0, 0): e(x)
    for it in range(4):
        b = it & 1
        e("s_waitcnt lgkmcnt(0)")
        nxt = reads(1 - b, it + 1) if it < 3 else []
        mf = []
        for i in range(8):
            for j in range(8 - i):
                t = i + j
                mf.append(f"v_mfma_f32_16x16x32_bf16 v[{ACC+4*t}:{ACC+4*t+3}], v[{FY[b]+4*i}:{FY[b]+4*i+3}], v[{FX[b]+4*j}:{FX[b]+4*j+3}], v[{ACC+4*t}:{ACC+4*t+3}]")
        for k, m in enumerate(mf):
            e(m)
            if k < len(nxt): e(nxt[k])
    e(";STAMP 3")
    e(f"""
    v_lshlrev_b32 v14, 4, v2
    s_lshl_b32 s31, s21, 12
    s_add_u32 s31, s31, {CV_EX}
    v_add_u32 v15, s31, v14
    s_xor_b32 s32, s21, 1
    s_lshl_b32 s32, s32, 12
    s_add_u32 s32, s32, {CV_EX}
    v_add_u32 v14, s32, v14
    s_cmp_eq_u32 s23, 0
    s_cbranch_scc1 L_cv_x0
    """)
    for i in range(4): e(f"ds_write_b128 v15, v[{ACC+4*i}:{ACC+4*i+3}] offset:{1024*i}")
    for r in range(16): e(f"v_mov_b32 v{ACC+r}, v{ACC+16+r}")
    e("s_branch L_cv_x1")
    a.label('L_cv_x0')
    for i in range(4): e(f"ds_write_b128 v15, v[{ACC+16+4*i}:{ACC+16+4*i+3}] offset:{1024*i}")
    a.label('L_cv_x1')
    e("s_waitcnt lgkmcnt(0)\ns_barrier")
    for i in range(4): e(f"ds_read_b128 v[{64+4*i}:{64+4*i+3}], v14 offset:{1024*i}")
    e(f"""
    v_lshlrev_b32 v9, 5, v10          ; 32 a0
    v_lshl_add_u32 v9, v11, 3, v9     ; + 8 q4
    s_lshl_b32 s31, s23, 11
    v_add_u32 v9, s31, v9
    s_add_u32 s32, s29, {3*4160+32}
    v_add_u32 v8, s32, v9
    """)
    for i in range(4): e(f"ds_read_b64 v[{96+2*i}:{97+2*i}], v8 offset:{512*i}")
    e(f"""
    s_lshl_b32 s33, s26, 16
    s_and_b32 s26, s26, 0xffff0000
    s_cmp_eq_u32 s22, 0
    s_cselect_b32 s26, s33, s26
    v_add_u32 v9, s27, v9             ; + d*4096
    s_waitcnt lgkmcnt(0)
    """)
    for t in range(4):
        for i in range(4):
            r = 4*t + i
            uv = 96 + 2*t + (i >> 1)
            if i & 1: e(f"v_and_b32 v5, 0xffff0000, v{uv}")
            else: e(f"v_lshlrev_b32 v5, 16, v{uv}")
            e(f"""
            v_add_f32 v{ACC+r}, v{ACC+r}, v{64+r}
            v_mul_f32 v5, s26, v5
            v_cvt_pk_bf16_f32 v{ACC+r}, 0, v{ACC+r}
            v_cvt_pk_bf16_f32 v5, 0, v5
            v_add_f32 v{ACC+r}, v{ACC+r}, v5
            """)
        e(f"v_cvt_pk_bf16_f32 v{104+2*t}, v{ACC+4*t}, v{ACC+4*t+1}")
        e(f"v_cvt_pk_bf16_f32 v{105+2*t}, v{ACC+4*t+2}, v{ACC+4*t+3}")
        e(f"global_store_dwordx2 v9, v[{104+2*t}:{105+2*t}], s[10:11] offset:{512*t} sc1")
    e(";STAMP 4")
    e(f"""
    s_waitcnt vmcnt(0)
    s_barrier
    s_lshr_b32 s31, s20, 5
    s_lshl_b32 s31, s31, 5
    v_mov_b32 v5, s31
    v_mov_b32 v6, 1
    v_cmp_eq_u32 vcc, 0, v0
    s_and_saveexec_b64 s[30:31], vcc
    s_cbranch_execz L_cv_end
    global_atomic_add v5, v6, s[18:19] sc1
    """)
    a.label('L_cv_end')
    e("s_endpgm")

def kernel_b(opt):
    a = Asm(); e = a.e
    e(".globl kb_kernel\n.p2align 8\n.type kb_kernel,@function")
    a.label('kb_kernel')
    m = opt.get('maskb', 3)
    e(f"""
    s_cmp_lt_u32 s2, 224
    s_cbranch_scc1 {'L_gemm2' if m & 1 else 'L_exit_b'}
    s_cmp_lt_u32 s2, 448
    s_cbranch_scc1 {'L_conv' if m & 2 else 'L_exit_b'}
    """)
    a.label('L_exit_b')
    e("s_endpgm")
    gemm2(a, opt); conv(a, opt)
    return a
```

```python
import sys
from gen_a import kernel_a
from gen_b import kernel_b
from common import *

HEADER = open('gated_mix__ssm_conv_s4__glu_gated_bilinear__prompt.s.ref').read().split('; Override launch geometry')[0]

def desc(name, vg, sg):
    return f""".amdhsa_kernel {name}
  .amdhsa_next_free_vgpr {vg}
  .amdhsa_next_free_sgpr {sg}
  .amdhsa_accum_offset {vg}
  .amdhsa_group_segment_fixed_size 0
  .amdhsa_kernarg_size 136
  .amdhsa_user_sgpr_count 2
  .amdhsa_user_sgpr_kernarg_segment_ptr 1
  .amdhsa_system_sgpr_workgroup_id_x 1
  .amdhsa_float_denorm_mode_32 3
.end_amdhsa_kernel
"""

def build(opt=None):
    opt = opt or {}
    ka = kernel_a(opt); kb = kernel_b(opt)
    from asmlib import Ins
    for k, (name, off) in ((ka, ('ka_kernel', 0xF00000)), (kb, ('kb_kernel', 0xF40000))):
        out = []
        for ins in k.ins:
            t = ins.text.strip()
            if t.startswith(';STAMP'):
                if opt.get('stamp'):
                    n = int(t.split()[1])
                    out.append(Ins('s_waitcnt lgkmcnt(0)'))
                    out.append(Ins('s_memtime s[%d:%d]' % (66+2*n, 67+2*n)))
                    out.append(Ins('s_waitcnt lgkmcnt(0)'))
                continue
            if opt.get('stamp'):
                if ins.is_label and ins.text.startswith(name):
                    out.append(ins)
                    out.append(Ins('s_memrealtime s[60:61]')); out.append(Ins('s_memtime s[64:65]')); out.append(Ins('s_load_dwordx2 s[56:57], s[0:1], %d' % KA_WS)); out.append(Ins('s_mov_b32 s58, s2'))
                    for n in range(12): out.append(Ins('s_mov_b32 s%d, 0' % (66+2*n)))
                    out.append(Ins('s_waitcnt lgkmcnt(0)'))
                    continue
                if ins.op == 's_endpgm':
                    seq = ['s_waitcnt vmcnt(0) lgkmcnt(0)', 's_memrealtime s[62:63]', 's_memtime s[90:91]', 's_mov_b64 exec, -1', 's_waitcnt lgkmcnt(0)',
                              's_add_u32 s56, s56, %d' % off, 's_addc_u32 s57, s57, 0', 's_lshl_b32 s58, s58, 8',
                              'v_lshrrev_b32 v1, 6, v0', 'v_lshlrev_b32 v1, 6, v1', 'v_add_u32 v1, s58, v1',
                              'v_mov_b32 v2, s60', 'v_mov_b32 v3, s61', 'v_mov_b32 v4, s62', 'v_mov_b32 v5, s63']
                    for n in range(11): seq.append('s_sub_u32 s%d, s%d, s64' % (66+2*n, 66+2*n))
                    seq.append('s_sub_u32 s90, s90, s64')
                    for n in range(11): seq.append('v_mov_b32 v%d, s%d' % (6+n, 66+2*n))
                    seq.append('v_mov_b32 v17, s90')
                    seq += ['v_and_b32 v18, 63, v0', 'v_cmp_eq_u32 vcc, 0, v18', 's_and_saveexec_b64 s[54:55], vcc',
                              'global_store_dwordx4 v1, v[2:5], s[56:57]', 'global_store_dwordx4 v1, v[6:9], s[56:57] offset:16',
                              'global_store_dwordx4 v1, v[10:13], s[56:57] offset:32', 'global_store_dwordx4 v1, v[14:17], s[56:57] offset:48', 's_waitcnt vmcnt(0)']
                    for t2 in seq: out.append(Ins(t2))
            out.append(ins)
        k.ins = out
    for k in (ka, kb):
        pr = k.fix_hazards()
        for p in pr: print("BRANCH HAZARD:", p, file=sys.stderr)
    s = HEADER
    s += "; @launch kernel=ka_kernel grid=(512,1,1) block=(256,1,1) lds=81920\n"
    s += "; @launch kernel=kb_kernel grid=(448,1,1) block=(256,1,1) lds=65536\n"
    s += '.amdgcn_target "amdgcn-amd-amdhsa--gfx950"\n.text\n'
    s += ka.text() + kb.text()
    s += '.section .rodata,"a"\n.p2align 6\n' + desc('ka_kernel', 256, 96 if opt.get('stamp') else 64) + '.p2align 6\n' + desc('kb_kernel', 256, 96 if opt.get('stamp') else 64)
    return s

if __name__ == '__main__':
    out = sys.argv[1] if len(sys.argv) > 1 else 'gated_mix__ssm_conv_s4__glu_gated_bilinear__prompt.s'
    opt = {}
    for kv in sys.argv[2:]:
        k, v = kv.split('='); opt[k] = int(v)
    open(out, 'w').write(build(opt))
    print("wrote", out)
```
